```python
import torch

def _softmax(x, axis=-1):
    return torch.softmax(x, dim=axis)

def _gelu(x):
    return torch.nn.functional.gelu(x, approximate='tanh')

def _silu(x):
    return torch.nn.functional.silu(x)

def _sigmoid(x):
    return torch.sigmoid(x)

def _layernorm(x, axis=-1, eps=1e-05):
    m = x.mean(dim=axis, keepdim=True)
    v = x.var(dim=axis, keepdim=True, unbiased=False)
    return (x - m) / torch.sqrt(v + eps)

def _scatter_add(tgt, idx, src, axis=0):
    return tgt.clone().index_add_(axis, idx, src)

def _segment_sum(src, seg, n):
    out = torch.zeros((n,) + src.shape[1:], dtype=src.dtype)
    return out.index_add_(0, seg, src)

def _pad(x, pw):
    flat = tuple((v for pair in reversed(pw) for v in pair))
    return torch.nn.functional.pad(x, flat)
kernel_name = 'adaLN_cond__ssm_conv_s4__glu_gated_bilinear__prompt'

def setup_inputs():

    _w = lambda a: (lambda t: t.to(torch.bfloat16) if t.is_floating_point() else t)(torch.as_tensor(a))

    def _A_setup():
        B, L, D, N = (1, 2048, 512, 128)
        A_re = -(lambda _x: torch.exp(torch.as_tensor(_x)))((lambda *s: torch.randn(*s, dtype=torch.bfloat16) * 3.2)(D, N))
        A_im = torch.pi * (lambda *s: torch.randn(*s, dtype=torch.bfloat16) * 0.1)(D, N)
        B_re = (lambda *s: torch.randn(*s, dtype=torch.bfloat16) * 0.1)(D, N)
        B_im = (lambda *s: torch.randn(*s, dtype=torch.bfloat16) * 0.1)(D, N)
        C_re = (lambda *s: torch.randn(*s, dtype=torch.bfloat16) * 0.1)(D, N)
        C_im = (lambda *s: torch.randn(*s, dtype=torch.bfloat16) * 0.1)(D, N)
        log_dt = (lambda *s: torch.randn(*s, dtype=torch.bfloat16) * 0.1)(D) * 0.5 - 4.0
        Dskip = (lambda *s: torch.randn(*s, dtype=torch.bfloat16) * 0.1)(D)
        return {'u': _w((lambda *s: torch.randn(*s, dtype=torch.bfloat16) * 0.05)(B, L, D)), 'A_re': _w(A_re), 'A_im': _w(A_im), 'B_re': _w(B_re), 'B_im': _w(B_im), 'C_re': _w(C_re), 'C_im': _w(C_im), 'log_dt': _w(log_dt), 'Dskip': _w(Dskip)}
    _A_in = _A_setup()

    def _B_setup():
        B, S, D, F = (1, 2048, 512, 1792)
        return {'x': _w((lambda *s: torch.randn(*s, dtype=torch.bfloat16) * 0.05)(B, S, D)), 'w_gate': _w((lambda *s: torch.randn(*s, dtype=torch.bfloat16) * 1.6)(D, F) * D ** (-0.5)), 'w_up': _w((lambda *s: torch.randn(*s, dtype=torch.bfloat16) * 1.6)(D, F) * D ** (-0.5)), 'w_down': _w((lambda *s: torch.randn(*s, dtype=torch.bfloat16) * 1.6)(F, D) * F ** (-0.5))}
    _B_in = _B_setup()
    return {'A_u': _A_in['u'], 'A_A_re': _A_in['A_re'], 'A_A_im': _A_in['A_im'], 'A_B_re': _A_in['B_re'], 'A_B_im': _A_in['B_im'], 'A_C_re': _A_in['C_re'], 'A_C_im': _A_in['C_im'], 'A_log_dt': _A_in['log_dt'], 'A_Dskip': _A_in['Dskip'], 'B_x': _B_in['x'], 'B_w_gate': _B_in['w_gate'], 'B_w_up': _B_in['w_up'], 'B_w_down': _B_in['w_down'], 'c': _w((lambda *s: torch.randn(*s, dtype=torch.bfloat16) * 0.2)(1, 512) * 8.0), 'w_mod': _w((lambda *s: torch.randn(*s, dtype=torch.bfloat16) * 0.2)(512, 6 * 512) * 512 ** (-0.5) * 8.0)}

def reference(A_u, A_A_re, A_A_im, A_B_re, A_B_im, A_C_re, A_C_im, A_log_dt, A_Dskip, B_x, B_w_gate, B_w_up, B_w_down, c, w_mod):

    def _A_ref(u, A_re, A_im, B_re, B_im, C_re, C_im, log_dt, Dskip):
        Bsz, L, D = u.shape
        dt = torch.exp(log_dt)[:, None]
        A = A_re + 1j * A_im
        Bc = B_re + 1j * B_im
        Cc = C_re + 1j * C_im
        logdA = dt * A
        dB = dt * Bc
        l = (lambda x, dt: x.to(dt))(torch.arange(L), A_re.dtype)
        P = torch.exp(logdA[:, :, None] * l[None, None, :])
        K = torch.einsum('dn,dnl,dn->dl', Cc, P, dB).real
        L2 = 2 * L
        Kp = _pad(K, ((0, 0), (0, L)))
        up = (lambda x, *d: x.permute(*d))(u, 0, 2, 1)
        up = _pad(up, ((0, 0), (0, 0), (0, L)))
        Kf = (lambda x, axes=(-2, -1): torch.fft.rfft2(x.float(), dim=axes))(Kp[:, None, :], axes=(-2, -1))
        Uf = (lambda x, axes=(-2, -1): torch.fft.rfft2(x.float(), dim=axes))(up[:, :, None, :], axes=(-2, -1))
        Yf = Uf * Kf[None, :, :, :]
        y = (lambda x, s, axes=(-2, -1): torch.fft.irfft2(x, s=s, dim=axes).to(torch.bfloat16))(Yf, (1, L2), axes=(-2, -1))[:, :, 0, :L]
        y = (lambda x, *d: x.permute(*d))(y, 0, 2, 1) + u * Dskip[None, None, :]
        return y

    def _B_ref(x, w_gate, w_up, w_down):
        g = torch.einsum('bsd,df->bsf', x, w_gate)
        u = torch.einsum('bsd,df->bsf', x, w_up)
        h = g * u
        return torch.einsum('bsf,fd->bsd', h, w_down)
    x = A_u
    mod = (_silu(c) @ w_mod).reshape(c.shape[0], 6, 1, -1)
    sa, ca, ga, sb, cb, gb = (mod[:, 0].clone(), mod[:, 1].clone(), mod[:, 2].clone(), mod[:, 3].clone(), mod[:, 4].clone(), mod[:, 5].clone())
    h = _layernorm(x, axis=-1) * (1 + ca) + sa
    x = x + ga * _A_ref(h, A_A_re, A_A_im, A_B_re, A_B_im, A_C_re, A_C_im, A_log_dt, A_Dskip)
    h = _layernorm(x, axis=-1) * (1 + cb) + sb
    x = x + gb * _B_ref(h, B_w_gate, B_w_up, B_w_down)
    return x
```

```python
import re

REG = re.compile(r'^(-|abs\()?([vsa])(?:(\d+)|\[(\d+):(\d+)\])\)?$')
TRANS = ('v_exp_f32', 'v_log_f32', 'v_rcp_f32', 'v_rsq_f32', 'v_sqrt_f32', 'v_sin_f32', 'v_cos_f32')


def regs_of(tok):
    tok = tok.strip()
    if tok == 'vcc':
        return {'vcc'}
    if tok in ('exec', 'm0'):
        return {tok}
    if tok in ('vcc_lo', 'vcc_hi'):
        return {'vcc'}
    if tok in ('exec_lo', 'exec_hi'):
        return {'exec'}
    m = REG.match(tok)
    if not m:
        return set()
    k = m.group(2)
    if m.group(3) is not None:
        return {k + m.group(3)}
    return {k + str(i) for i in range(int(m.group(4)), int(m.group(5)) + 1)}


class Ins:
    def __init__(self, text):
        self.text = text
        self.label = None
        self.target = None
        t = text.split(';')[0].strip()
        if t.endswith(':'):
            self.label = t[:-1]
            self.op = None
            self.kind = 'label'
            self.defs = set(); self.uses = set()
            return
        parts = t.split(None, 1)
        self.op = op = parts[0]
        rest = parts[1] if len(parts) > 1 else ''
        ops = [o.strip() for o in re.split(r',(?![^\[]*\])', rest)] if rest else []
        self.mods = ''
        if ops:
            last = ops[-1].split(None, 1)
            ops[-1] = last[0]
            self.mods = last[1] if len(last) > 1 else ''
        self.ops = ops
        R = [regs_of(o) for o in ops]
        U = lambda idx: set().union(*[R[i] for i in idx]) if idx else set()
        n = len(ops)
        self.dpp = op.endswith('_dpp')
        self.srcA = self.srcB = self.srcC = set()
        self.store_data = set()
        if op.startswith('v_mfma'):
            self.kind = 'mfma'
            self.defs = R[0]; self.srcA, self.srcB, self.srcC = R[1], R[2], R[3]
            self.uses = R[1] | R[2] | R[3]
            self.passes = 8 if '32x32x16' in op else 4
        elif op.startswith('v_'):
            self.kind = 'valu'
            base = op.replace('_dpp', '').replace('_e32', '').replace('_e64', '')
            self.base = base
            if base in ('v_permlane16_swap_b32', 'v_permlane32_swap_b32', 'v_swap_b32'):
                self.defs = R[0] | R[1]; self.uses = R[0] | R[1]
            elif base.startswith(('v_add_co', 'v_sub_co', 'v_addc_co', 'v_subb_co')):
                self.defs = R[0] | R[1]; self.uses = U(range(2, n))
            elif base == 'v_nop':
                self.defs = set(); self.uses = set()
            else:
                self.defs = set(R[0]); self.uses = U(range(1, n))
                if base.startswith(('v_fmac', 'v_dot2c', 'v_writelane')) or (self.dpp and 'bound_ctrl' not in self.mods):
                    self.uses |= R[0]
                if base.startswith('v_cmpx'):
                    self.defs |= {'exec'}
        elif op.startswith(('global_', 'buffer_')):
            self.kind = 'vmem'
            lds = 'load_lds' in op or re.search(r'\blds\b', self.mods)
            self.dma = bool(lds)
            if lds:
                self.defs = set(); self.uses = U(range(n)) | {'m0'}
            elif 'load' in op:
                self.defs = set(R[0]); self.uses = U(range(1, n))
            elif 'atomic' in op and 'sc0' in self.mods:
                self.defs = set(R[0]); self.uses = U(range(1, n))
            else:
                self.defs = set(); self.uses = U(range(n))
                if op.endswith(('x3', 'x4')):
                    self.store_data = R[1] if op.startswith('global_') else R[0]
        elif op.startswith('ds_'):
            self.kind = 'ds'
            if op.startswith(('ds_read', 'ds_bpermute', 'ds_permute', 'ds_swizzle')) or '_rtn' in op:
                self.defs = set(R[0]); self.uses = U(range(1, n))
            else:
                self.defs = set(); self.uses = U(range(n))
            if 'addtid' in op:
                self.uses |= {'m0'}
        elif op.startswith(('s_load', 's_memtime', 's_memrealtime')):
            self.kind = 'smem'
            self.defs = set(R[0]); self.uses = U(range(1, n))
        elif op.startswith('s_'):
            self.kind = 'salu'
            self.defs = set(); self.uses = set()
            if op.startswith(('s_branch', 's_cbranch')):
                self.target = ops[0]
            elif op.startswith(('s_cmp', 's_bitcmp')):
                self.uses = U(range(n))
            elif op in ('s_waitcnt', 's_barrier', 's_nop', 's_endpgm', 's_sleep', 's_setprio'):
                pass
            else:
                self.defs = set(R[0]); self.uses = U(range(1, n))
                if 'saveexec' in op:
                    self.defs |= {'exec'}
                if op.startswith(('s_addk', 's_mulk')):
                    self.uses |= R[0]
        else:
            raise ValueError('unknown instruction: ' + text)

    def states(self):
        if self.kind == 'label':
            return 0
        if self.op == 's_nop':
            return int(self.ops[0], 0) + 1
        return 1


def isv(s):
    return {r for r in s if r[0] in 'va' and r != 'vcc'}


def iss(s):
    return {r for r in s if r[0] == 's' or r == 'vcc'}


def need(p, c):
    n = 0
    if p.kind == 'valu':
        vd = isv(p.defs); sd = iss(p.defs)
        isdot = p.base.startswith('v_dot')
        if c.kind == 'mfma' and vd & c.uses:
            n = max(n, 3 if isdot else 2)
        if c.kind == 'mfma' and 'exec' in p.defs:
            n = max(n, 4)
        if c.kind == 'valu':
            if isdot and vd & (c.uses | c.defs):
                acc_only = c.base == p.base and not (vd & (regs_of(c.ops[1]) | regs_of(c.ops[2])))
                if not acc_only:
                    n = max(n, 3)
            if p.base in TRANS and vd & c.uses:
                n = max(n, 1)
            if c.dpp and vd & c.uses:
                n = max(n, 2)
            if c.base.startswith('v_permlane') and vd & c.uses:
                n = max(n, 2)
            if c.base in ('v_readlane_b32', 'v_readfirstlane_b32') and vd & c.uses:
                n = max(n, 1)
            if sd & c.uses:
                n = max(n, 4 if c.base in ('v_readlane_b32', 'v_writelane_b32') else 2)
            if 'exec' in p.defs:
                n = max(n, 5 if c.dpp else 4 if c.base.startswith(('v_readlane', 'v_readfirstlane', 'v_writelane', 'v_permlane')) else 0)
        if c.kind in ('vmem', 'ds') and isdot and vd & (c.uses | c.defs):
            n = max(n, 3)
        if c.kind == 'vmem' and sd & c.uses:
            n = max(n, 5)
        if c.kind in ('salu', 'smem') and sd & c.uses:
            n = max(n, 2)
    elif p.kind == 'mfma':
        big = p.passes == 8
        if c.kind == 'mfma':
            if p.defs & (c.srcA | c.srcB):
                n = max(n, 12 if big else 8)
            if p.defs & c.srcC and not (p.defs == c.srcC and p.passes == c.passes):
                n = max(n, 10 if big else 6)
            if p.defs & c.defs and not (p.defs == c.defs and p.passes == c.passes):
                n = max(n, 12 if big else 8)
        elif c.kind in ('valu', 'vmem', 'ds'):
            if p.defs & (c.uses | c.defs):
                n = max(n, 12 if big else 8)
            if c.kind == 'valu' and p.srcC & c.defs:
                n = max(n, 7 if big else 3)
    elif p.kind == 'salu':
        if 'm0' in p.defs and 'm0' in c.uses and c.kind in ('vmem', 'ds'):
            n = max(n, 1)
    elif p.kind == 'vmem':
        if p.store_data and p.store_data & c.defs:
            n = max(n, 2 if c.kind in ('valu', 'mfma') else 1)
    return n


class Tok:
    def __init__(self, cls, maybe):
        self.cls = cls; self.maybe = maybe


class Asm:
    def __init__(self):
        self.ins = []
        self.q = {'vm': [], 'lgkm': []}
        self.maybe = False
        self.uid = 0

    def __call__(self, text):
        tok = None
        for line in text.strip().split('\n'):
            line = line.strip()
            if not line or line.startswith(';'):
                continue
            i = Ins(line)
            self.ins.append(i)
            if i.kind == 'vmem':
                tok = Tok('vm', self.maybe); self.q['vm'].append(tok)
            elif i.kind == 'ds':
                tok = Tok('lgkm', self.maybe); self.q['lgkm'].append(tok)
            elif i.kind == 'smem':
                tok = Tok('lgkm', self.maybe); tok.smem = True; self.q['lgkm'].append(tok)
            elif i.op == 's_waitcnt':
                for cls, name in (('vm', 'vmcnt'), ('lgkm', 'lgkmcnt')):
                    m = re.search(name + r'\((\d+)\)', line)
                    if m and int(m.group(1)) == 0:
                        self.q[cls] = []
        return tok

    def label(self, base):
        self.uid += 1
        return f'L_{base}_{self.uid}'

    def wait(self, *toks):
        cnt = {}
        for t in toks:
            q = self.q[t.cls]
            if t not in q:
                continue
            k = q.index(t)
            after = sum(1 for x in q[k + 1:] if not x.maybe)
            if t.cls == 'lgkm' and any(getattr(x, 'smem', False) for x in q):
                after = 0
            cnt[t.cls] = min(cnt.get(t.cls, (99, 0))[0], after), max(cnt.get(t.cls, (0, 0))[1], k)
        if not cnt:
            return
        parts = []
        for cls, (after, k) in cnt.items():
            lim = 63 if cls == 'vm' else 15
            after = min(after, lim)
            parts.append(f"{'vmcnt' if cls == 'vm' else 'lgkmcnt'}({after})")
            self.q[cls] = self.q[cls][k + 1:] if after else []
        self.ins.append(Ins('s_waitcnt ' + ' '.join(parts)))

    def fork(self):
        return {k: list(v) for k, v in self.q.items()}

    def restore(self, st):
        self.q = {k: list(v) for k, v in st.items()}

    def join(self, *states):
        for cls in self.q:
            lists = [s[cls] for s in states]
            merged = []
            for l in lists:
                for t in l:
                    if t not in merged:
                        merged.append(t)
            for t in merged:
                if not all(t in l for l in lists):
                    t.maybe = True
            self.q[cls] = merged

    def _cfg(self):
        lab = {i.label: k for k, i in enumerate(self.ins) if i.kind == 'label'}
        succ = [[] for _ in self.ins]
        for k, i in enumerate(self.ins):
            if i.op == 's_endpgm':
                continue
            if i.target is not None:
                succ[k].append(lab[i.target])
                if i.op == 's_branch':
                    continue
            if k + 1 < len(self.ins):
                succ[k].append(k + 1)
        pred = [[] for _ in self.ins]
        for k, s in enumerate(succ):
            for j in s:
                pred[j].append(k)
        return succ, pred

    def fix_hazards(self):
        total = 0
        again = True
        while again:
            again = False
            succ, pred = self._cfg()
            k = 0
            while k < len(self.ins):
                c = self.ins[k]
                pad = 0
                if c.kind != 'label':
                    stack = [(j, 0) for j in pred[k]]; seen = {}
                    while stack:
                        j, d = stack.pop()
                        if d >= 12 or seen.get(j, 99) <= d:
                            continue
                        seen[j] = d
                        p = self.ins[j]
                        if p.kind != 'label':
                            pad = max(pad, need(p, c) - d)
                        for jj in pred[j]:
                            stack.append((jj, d + p.states()))
                if pad > 0:
                    self.ins.insert(k, Ins(f's_nop {pad - 1}')); total += 1; again = True
                    succ, pred = self._cfg()
                    k += 1
                k += 1
        return total

    def check_waits(self):
        succ, _ = self._cfg()
        seen = set(); errs = set()
        stack = [(0, (), (), (), 0)]
        steps = 0
        self.barrier_counts = set()
        while stack:
            k, vm, lg, pr, nb = stack.pop()
            while True:
                steps += 1
                if steps > 20_000_000:
                    raise RuntimeError('check_waits: too many states')
                i = self.ins[k]
                if i.kind == 'label' or i.target is not None:
                    key = (k, vm, lg, pr, nb)
                    if key in seen:
                        break
                    seen.add(key)
                if i.kind != 'label':
                    touch = i.uses | i.defs
                    for q in (vm, lg):
                        for j in q:
                            p = self.ins[j]
                            if p.defs & touch:
                                same_q = (i.kind == 'vmem' and p.kind == 'vmem') or (i.kind == 'ds' and p.kind == 'ds')
                                if same_q and not (p.defs & i.uses):
                                    continue
                                errs.add((k, j))
                    if i.op == 's_waitcnt':
                        m = re.search(r'vmcnt\((\d+)\)', i.text)
                        if m:
                            n = int(m.group(1)); vm = vm[len(vm) - n:] if 0 < n < len(vm) else (() if n == 0 else vm)
                        m = re.search(r'lgkmcnt\((\d+)\)', i.text)
                        if m:
                            n = int(m.group(1))
                            if n == 0:
                                lg = ()
                            elif n < len(lg) and not any(self.ins[j].kind == 'smem' for j in lg):
                                lg = lg[len(lg) - n:]
                    elif i.kind == 'vmem':
                        vm = (vm + (k,))[-64:]
                    elif i.kind in ('ds', 'smem'):
                        lg = (lg + (k,))[-48:]
                    if i.op == 's_barrier':
                        nb += 1
                s = succ[k]
                if not s:
                    self.barrier_counts.add(nb)
                    break
                role = getattr(i, 'role', None)
                if role is not None:
                    name, fall = role
                    known = dict(pr)
                    if name in known:
                        k = s[1] if known[name] == fall else s[0]
                        continue
                    stack.append((s[1], vm, lg, tuple(sorted(pr + ((name, fall),))), nb))
                    pr = tuple(sorted(pr + ((name, not fall),)))
                    k = s[0]
                    continue
                for j in s[1:]:
                    stack.append((j, vm, lg, pr, nb))
                k = s[0]
        return [f'{self.ins[k].text}   <-- pending: {self.ins[j].text}' for k, j in sorted(errs)]

    def text(self):
        return '\n'.join((i.text if i.kind == 'label' else '    ' + i.text) for i in self.ins) + '\n'
```

```python
import sys
from asmlib import Asm

NAME = 'adaLN_cond__ssm_conv_s4__glu_gated_bilinear__prompt'

WS_ST1 = 0x10000
WS_MODP = 0x20000
WS_F2 = 0x40000
WS_F3 = 0x50000
WS_ST2 = 0x80000
WS_DBG = 0xC0000
WS_XT = 0x100000
WS_X1 = 0x500000
WS_X1S = 0x700000
WS_HH = 0x900000
WS_DUMP = 0x1100000

L_W = 0
L_P = 0
L_Q = 22176
L_CP = 0
L_H = 131072
L_PART = L_H + 9216
L_KT = L_PART
L_SV = L_PART + 16384
L_CF = L_SV + 2048
L_SILU = L_CF + 4096
L_SP = L_SILU + 256
L_GB = L_SP + 512
LDS_BYTES = 163840
assert L_GB + 256 == LDS_BYTES

S_X, S_ARE, S_AIM, S_BRE, S_BIM, S_CRE, S_CIM, S_LDT, S_DSK = 4, 6, 8, 10, 12, 14, 16, 18, 20
S_WG, S_WU, S_WD, S_C, S_WM, S_OUT, S_DBG, S_WS = 24, 26, 28, 30, 32, 34, 36, 38
S_V = 3
S_P, S_XCD, S_IDX, S_G = 40, 41, 42, 43
S_TAG = 44
S_LDTV, S_DSKV = 46, 47
S_T = 48
S_SPIN = 58
S_U = 59
S_MB1, S_NB1, S_ODD, S_RG1, S_RG2, S_DB = 60, 61, 62, 63, 22, 23
S_MOD = 6
S_STAMP = 64

ROLES = {f's_cmp_eq_u32 s{S_G}, 0': ('g0', True), f's_cmp_eq_u32 s{S_G}, 1': ('g0', False),
         f's_bitcmp0_b32 s{S_V}, 0': ('ts0', True), f's_cmp_eq_u32 s{S_T + 6}, s{S_U}': ('job', True)}

LOG2E = 0x3fb8aa3b
ONES = 0x3f803f80


def sp(n):
    return f's[{n}:{n + 1}]'


def vr(n, k=1):
    return f'v{n}' if k == 1 else f'v[{n}:{n + k - 1}]'


def fhex(x):
    import struct
    return hex(struct.unpack('<I', struct.pack('<f', x))[0])


class Gen:
    def __init__(self, stamps=False, dump=None, opt=None):
        self.a = Asm()
        self.stamps = stamps
        self.dump = dump
        self.nst = 0
        self.stamp_names = {}
        self.o = dict(early=0, mid=0)
        if opt:
            self.o.update(opt)

    def stamp(self, k, name):
        if self.stamps:
            self.stamp_names[k] = name
            self.a(f's_memrealtime {sp(S_STAMP + 2 * k)}')

    def barrier(self):
        self.a('s_waitcnt lgkmcnt(0)\ns_barrier')

    def poll(self, issue, tags, first):
        a = self.a
        a.wait(first)
        chk, done = a.label('chk'), a.label('ok')
        a(f's_mov_b32 s{S_SPIN}, 0')
        a(f'{chk}:')
        a(f'v_cmp_ne_u64 vcc, {sp(S_TAG)}, {vr(tags[0], 2)}')
        for k, t in enumerate(tags[1:]):
            s = S_T + 2 * (k % 4)
            a(f'v_cmp_ne_u64 {sp(s)}, {sp(S_TAG)}, {vr(t, 2)}')
            if k % 4 == 3 or k == len(tags) - 2:
                for j in range(k % 4 + 1):
                    a(f's_or_b64 vcc, vcc, {sp(S_T + 2 * j)}')
        a(f's_cmp_eq_u64 vcc, 0')
        a(f's_cbranch_scc1 {done}')
        st = a.fork()
        a(f's_add_u32 s{S_SPIN}, s{S_SPIN}, 1')
        a(f's_cmp_gt_u32 s{S_SPIN}, 0x40000')
        a(f's_cbranch_scc1 {done}')
        a('s_sleep 1')
        issue()
        a('s_waitcnt vmcnt(0)')
        a(f's_branch {chk}')
        a.restore(st)
        a(f'{done}:')

    def cond(self, cmp, then, other=None):
        a = self.a
        els, end = a.label('else'), a.label('end')
        a(cmp)
        a(f's_cbranch_scc0 {els}')
        a.ins[-1].role = ROLES.get(cmp)
        st = a.fork()
        then()
        s1 = a.fork()
        if other:
            a(f's_branch {end}')
        a(f'{els}:')
        a.restore(st)
        if other:
            other()
            a(f'{end}:')
        a.join(s1, a.fork())

    def cmul(self, d, z, w, t):
        self.a(f'v_pk_mul_f32 {vr(t, 2)}, {vr(z, 2)}, {vr(w, 2)} op_sel:[0,0] op_sel_hi:[0,1]')
        self.a(f'v_pk_fma_f32 {vr(d, 2)}, {vr(z, 2)}, {vr(w, 2)}, {vr(t, 2)} op_sel:[1,1,0] op_sel_hi:[1,0,1] neg_lo:[1,0,0]')

    def cexp(self, d, ar, ai, k, t):
        a = self.a
        if k == 1:
            a(f'v_exp_f32 v{t}, v{ar}\nv_fract_f32 v{t + 1}, v{ai}')
        else:
            a(f'v_mul_f32 v{t}, {fhex(k)}, v{ar}\nv_mul_f32 v{t + 1}, {fhex(k)}, v{ai}')
            a(f'v_exp_f32 v{t}, v{t}\nv_fract_f32 v{t + 1}, v{t + 1}')
        a(f'v_cos_f32 v{d}, v{t + 1}\nv_sin_f32 v{d + 1}, v{t + 1}')
        a(f'v_pk_mul_f32 {vr(d, 2)}, {vr(d, 2)}, {vr(t, 2)} op_sel:[0,0] op_sel_hi:[1,0]')

    def wdma(self, steps):
        a = self.a
        tok = None
        for s in steps:
            a(f's_add_u32 s{S_T}, s{S_WG}, {s * 114688}\ns_addc_u32 s{S_T + 1}, s{S_WG + 1}, 0')
            a(f's_add_u32 s{S_T + 2}, s{S_WU}, {s * 114688}\ns_addc_u32 s{S_T + 3}, s{S_WU + 1}, 0')
            a(f's_lshl_b32 s{S_T + 4}, s{S_U}, 11')
            a(f's_add_u32 m0, s{S_T + 4}, {L_W + s * 8192}')
            a(f'global_load_lds_dwordx4 v2, {sp(S_T)}')
            a(f's_add_u32 m0, s{S_T + 4}, {L_W + s * 8192 + 1024}')
            tok = a(f'global_load_lds_dwordx4 v3, {sp(S_T + 2)}')
        return tok

    def dump_regs(self, name, regs, slot=0):
        if self.dump != name:
            return
        a = self.a
        a('s_waitcnt vmcnt(0) lgkmcnt(0)')
        a(f's_mul_i32 s{S_T}, s2, {256 * 2048}\ns_add_u32 s{S_T}, s{S_T}, {WS_DUMP}')
        a(f's_add_u32 s{S_T}, s{S_WS}, s{S_T}\ns_addc_u32 s{S_T + 1}, s{S_WS + 1}, 0')
        a('v_lshlrev_b32 v0, 2, v0')
        for k, r in enumerate(regs):
            a(f'global_store_dword v0, v{r}, {sp(S_T)}')
            a(f's_add_u32 s{S_T}, s{S_T}, 2048\ns_addc_u32 s{S_T + 1}, s{S_T + 1}, 0')
        a('v_lshrrev_b32 v0, 2, v0')

    def front(self):
        a = self.a
        a('s_cmp_ge_u32 s2, 256\ns_cbranch_scc1 L_exit')
        a('s_load_dwordx16 s[4:19], s[0:1], 0\ns_load_dwordx16 s[20:35], s[0:1], 64\ns_load_dwordx4 s[36:39], s[0:1], 128')
        self.stamp(0, 'start')
        a(f'''
        v_lshrrev_b32 v2, 6, v0
        v_and_b32 v1, 63, v0
        v_readfirstlane_b32 s{S_V}, v2
        s_and_b32 s{S_XCD}, s2, 7
        s_lshr_b32 s{S_IDX}, s2, 3
        s_lshl_b32 s{S_P}, s{S_XCD}, 5
        s_add_u32 s{S_P}, s{S_P}, s{S_IDX}
        s_lshr_b32 s{S_G}, s{S_V}, 2
        s_and_b32 s{S_U}, s{S_V}, 3
        ''')
        a(f'''
        v_and_b32 v32, 1, v1
        v_bfe_u32 v33, v1, 1, 1
        v_lshl_or_b32 v31, v32, 1, v33
        v_lshrrev_b32 v33, 2, v1
        v_lshlrev_b32 v33, 2, v33
        v_lshl_add_u32 v32, v31, 11, v33
        s_lshl_b32 s{S_T}, s2, 13
        s_lshl_b32 s{S_T + 1}, s{S_V}, 7
        s_add_u32 s{S_T}, s{S_T}, s{S_T + 1}
        v_add_u32 v32, s{S_T}, v32
        ''')
        a(f'''
        s_lshl_b32 s{S_T}, s{S_P}, 9
        s_lshl_b32 s{S_T + 1}, s{S_U}, 7
        s_add_u32 s{S_T}, s{S_T}, s{S_T + 1}
        v_lshl_add_u32 v33, v1, 1, s{S_T}
        ''')
        for r in range(12, 18):
            a(f'v_mov_b32 v{r}, 0')
        a(f'''
        s_and_b32 s{S_T + 2}, s2, 3
        s_lshl_b32 s{S_T + 3}, s{S_T + 2}, 7
        s_lshl_b32 s{S_T + 4}, s{S_V}, 4
        s_add_u32 s{S_T + 3}, s{S_T + 3}, s{S_T + 4}
        v_lshrrev_b32 v34, 3, v1
        v_add_u32 v34, s{S_T + 3}, v34
        v_mul_u32_u24 v34, 6144, v34
        v_and_b32 v35, 7, v1
        v_lshl_add_u32 v34, v35, 4, v34
        s_lshr_b32 s{S_T + 3}, s2, 2
        s_lshl_b32 s{S_T + 3}, s{S_T + 3}, 7
        v_add_u32 v34, s{S_T + 3}, v34
        v_add_u32 v35, {8 * 6144}, v34
        s_lshl_b32 s{S_T + 2}, s{S_T + 2}, 8
        v_lshl_add_u32 v36, v1, 2, s{S_T + 2}
        s_lshl_b32 s{S_T + 4}, s{S_V}, 11
        s_lshl_b32 s{S_T + 5}, s{S_P}, 2
        s_waitcnt lgkmcnt(0)
        ''')
        a(f's_load_dwordx2 {sp(S_TAG)}, {sp(S_WS)}, 0')
        a(f's_load_dword s{S_LDTV}, {sp(S_LDT)}, s{S_T + 5}')
        a(f's_load_dword s{S_DSKV}, {sp(S_DSK)}, s{S_T + 5}')
        a(f'global_load_dword v4, v32, {sp(S_X)}')
        a(f'global_load_dword v5, v32, {sp(S_X)} offset:1024')
        a(f'global_load_dword v8, v32, {sp(S_X)} offset:64')
        tx = a(f'global_load_dword v9, v32, {sp(S_X)} offset:1088')
        tc = a(f'global_load_dword v18, v36, {sp(S_C)}')
        self.tw = None

        def modload():
            a(f's_add_u32 m0, s{S_T + 4}, {L_KT}')
            a(f'global_load_lds_dwordx4 v34, {sp(S_WM)}')
            a(f's_add_u32 m0, s{S_T + 4}, {L_KT + 1024}')
            a(f'global_load_lds_dwordx4 v35, {sp(S_WM)}')
        self.cond('s_cmp_lt_u32 s2, 192', modload)
        a(f'global_load_short_d16_hi v12, v33, {sp(S_ARE)}')
        tp = a(f'global_load_short_d16_hi v13, v33, {sp(S_AIM)}')

        a(f'''
        s_and_b32 s{S_MB1}, s{S_XCD}, 1
        s_lshl_b32 s{S_MB1}, s{S_MB1}, 2
        s_and_b32 s{S_T}, s{S_IDX}, 3
        s_add_u32 s{S_MB1}, s{S_MB1}, s{S_T}
        s_lshr_b32 s{S_NB1}, s{S_XCD}, 1
        s_lshl_b32 s{S_NB1}, s{S_NB1}, 3
        s_lshr_b32 s{S_DB}, s{S_IDX}, 2
        s_add_u32 s{S_NB1}, s{S_NB1}, s{S_DB}
        s_and_b32 s{S_ODD}, s{S_NB1}, 1
        s_lshl_b32 s{S_RG2}, s{S_XCD}, 2
        s_add_u32 s{S_RG2}, s{S_RG2}, s{S_T}
        s_lshl_b32 s{S_RG1}, s{S_G}, 5
        s_lshl_b32 s{S_T}, s{S_MB1}, 2
        s_add_u32 s{S_RG1}, s{S_RG1}, s{S_T}
        s_add_u32 s{S_RG1}, s{S_RG1}, s{S_U}
        ''')
        a(f'''
        v_bfe_u32 v37, v1, 1, 2
        v_bfe_u32 v38, v1, 4, 1
        v_xor_b32 v37, v37, v38
        s_and_b32 s{S_T}, s{S_U}, 1
        s_lshl_b32 s{S_T}, s{S_T}, 1
        v_xor_b32 v37, s{S_T}, v37
        v_xor_b32 v38, 2, v37
        v_add_u32 v37, s{S_ODD}, v37
        v_add_u32 v38, s{S_ODD}, v38
        v_and_b32 v37, 3, v37
        v_and_b32 v38, 3, v38
        v_lshrrev_b32 v39, 3, v1
        s_lshl_b32 s{S_T}, s{S_U}, 3
        v_add_u32 v39, s{S_T}, v39
        v_mul_u32_u24 v39, 3584, v39
        v_and_b32 v40, 1, v1
        v_lshl_add_u32 v39, v40, 4, v39
        s_lshr_b32 s{S_T}, s{S_NB1}, 1
        s_mul_i32 s{S_T}, s{S_T}, 224
        s_mul_i32 s{S_T + 1}, s{S_ODD}, 96
        s_add_u32 s{S_T}, s{S_T}, s{S_T + 1}
        v_add_u32 v39, s{S_T}, v39
        v_lshl_add_u32 v2, v37, 5, v39
        v_lshl_add_u32 v3, v38, 5, v39
        ''')
        self.wsteps = list(range(15, -1, -1))

        def g1loads():
            for r, s in ((14, S_BRE), (15, S_BIM), (16, S_CRE), (17, S_CIM)):
                self.tp2 = a(f'global_load_short_d16_hi v{r}, v33, {sp(s)}')
            self.wdma(self.wsteps[:self.o['early']])
        self.cond(f's_cmp_eq_u32 s{S_G}, 1', g1loads)
        self.wsteps = self.wsteps[self.o['early']:]

        a(f'''
        v_mov_b32 v40, 0
        v_mov_b32 v41, 0
        v_bfe_u32 v37, v0, 6, 1
        v_mul_u32_u24 v37, 4608, v37
        v_lshl_add_u32 v37, v1, 3, v37
        v_add_u32 v37, {L_H}, v37
        ds_write_b64 v37, v[40:41]
        ''')
        a(f'''
        v_and_b32 v37, 255, v0
        v_lshlrev_b32 v37, 3, v37
        v_sub_u32 v37, 2037, v37
        v_cvt_f32_i32 v37, v37
        s_mul_i32 s{S_T}, s{S_G}, 9216
        s_add_u32 s{S_T}, s{S_T}, {L_KT}
        v_mov_b32 v44, {L_H}
        ''')
        for k in range(0, 11, 2):
            a(f'v_add_f32 v38, {fhex(float(k))}, v37\nv_add_f32 v39, {fhex(float(k + 1))}, v37')
            a('v_cvt_pk_bf16_f32 v40, v38, v39')
            for h in range(2):
                if k + h > 10:
                    continue
                a('v_lshlrev_b32 v41, 16, v40' if h == 0 else 'v_and_b32 v41, 0xffff0000, v40')
                if k + h < 3:
                    a('v_cmp_gt_f32 vcc, 0, v41')
                a(f'''
                v_cvt_u32_f32 v41, v41
                v_lshrrev_b32 v42, 8, v41
                v_and_b32 v43, 7, v41
                v_lshl_add_u32 v42, v42, 3, v43
                v_bfe_u32 v43, v41, 3, 5
                v_lshl_add_u32 v43, v43, 2, s{S_T}
                v_lshl_add_u32 v{20 + k + h}, v42, 7, v43
                ''')
                if k + h < 3:
                    a(f'v_cndmask_b32 v{20 + k + h}, v{20 + k + h}, v44, vcc')
        a(f'''
        s_lshl_b32 s{S_T}, s2, 14
        s_lshl_b32 s{S_T + 1}, s{S_V}, 11
        s_add_u32 s{S_T}, s{S_T}, s{S_T + 1}
        s_add_u32 s{S_T}, s{S_T}, {WS_XT}
        v_lshl_add_u32 v32, v1, 4, s{S_T}
        v_and_b32 v33, 3, v1
        v_lshrrev_b32 v34, 4, v1
        v_lshlrev_b32 v33, 4, v33
        v_lshl_add_u32 v33, v34, 2, v33
        s_lshl_b32 s{S_T}, s{S_V}, 6
        s_add_u32 s{S_T}, s{S_T}, {L_SP}
        v_add_u32 v33, s{S_T}, v33
        s_waitcnt lgkmcnt(0)
        s_add_u32 s{S_TAG}, s{S_TAG}, 1
        s_addc_u32 s{S_TAG + 1}, s{S_TAG + 1}, 0
        s_mov_b32 s{S_T}, {ONES}
        v_mov_b32 v6, s{S_TAG}
        v_mov_b32 v7, s{S_TAG + 1}
        v_mov_b32 v10, s{S_TAG}
        v_mov_b32 v11, s{S_TAG + 1}
        ''')
        self.stamp(1, 'pre')
        a.wait(tx)
        a(f'global_store_dwordx4 v32, v[4:7], {sp(S_WS)} sc1')
        a(f'global_store_dwordx4 v32, v[8:11], {sp(S_WS)} offset:1024 sc1')
        a(f'''
        v_dot2_f32_bf16 v36, v4, s{S_T}, 0
        v_dot2_f32_bf16 v37, v5, s{S_T}, 0
        v_dot2_f32_bf16 v38, v4, v4, 0
        v_dot2_f32_bf16 v39, v5, v5, 0
        v_dot2_f32_bf16 v36, v8, s{S_T}, v36
        v_dot2_f32_bf16 v37, v9, s{S_T}, v37
        v_dot2_f32_bf16 v38, v8, v8, v38
        v_dot2_f32_bf16 v39, v9, v9, v39
        v_permlane32_swap_b32 v36, v38
        v_permlane32_swap_b32 v37, v39
        v_add_f32 v36, v36, v38
        v_add_f32 v37, v37, v39
        v_permlane16_swap_b32 v36, v37
        v_add_f32 v36, v36, v37
        v_add_f32_dpp v36, v36, v36 row_ror:4 row_mask:0xf bank_mask:0xf
        v_add_f32_dpp v36, v36, v36 row_ror:8 row_mask:0xf bank_mask:0xf
        ds_write_b32 v33, v36
        ''')

        def silu():
            a.wait(tc)
            a(f'''
            v_lshlrev_b32 v36, 16, v18
            v_and_b32 v37, 0xffff0000, v18
            v_mul_f32 v38, {hex(LOG2E | 0x80000000)}, v36
            v_mul_f32 v39, {hex(LOG2E | 0x80000000)}, v37
            v_exp_f32 v38, v38
            v_exp_f32 v39, v39
            v_add_f32 v38, 1.0, v38
            v_add_f32 v39, 1.0, v39
            v_rcp_f32 v38, v38
            v_rcp_f32 v39, v39
            v_mul_f32 v36, v36, v38
            v_mul_f32 v37, v37, v39
            v_cvt_pk_bf16_f32 v36, v36, v37
            v_lshlrev_b32 v37, 2, v1
            v_add_u32 v37, {L_SILU}, v37
            ds_write_b32 v37, v36
            ''')
        self.cond(f's_cmp_eq_u32 s{S_V}, 7', silu)
        n_early = 2 * self.o['early']
        self.cond(f's_cmp_eq_u32 s{S_G}, 1', lambda: a(f's_waitcnt vmcnt({2 + n_early})'), lambda: a('s_waitcnt vmcnt(2)'))
        self.barrier()
        self.stamp(2, 'B1')

    def stats_final(self):
        a = self.a
        a(f'''
        v_and_b32 v36, 15, v1
        v_lshlrev_b32 v36, 4, v36
        v_add_u32 v36, {L_SP}, v36
        ds_read_b128 v[40:43], v36
        ds_read_b128 v[44:47], v36 offset:256
        s_lshl_b32 s{S_T}, s2, 6
        s_add_u32 s{S_T}, s{S_T}, {WS_ST1}
        v_lshl_add_u32 v37, v31, 4, s{S_T}
        s_mov_b32 s{S_T}, {fhex(1 / 512)}
        s_waitcnt lgkmcnt(0)
        v_pk_add_f32 v[40:41], v[40:41], v[44:45]
        v_pk_add_f32 v[42:43], v[42:43], v[46:47]
        ''')
        for sh in (4, 8):
            for r in range(40, 44):
                a(f'v_add_f32_dpp v{r}, v{r}, v{r} row_ror:{sh} row_mask:0xf bank_mask:0xf')
        for r in range(40, 44):
            a(f'v_mul_f32 v{r}, s{S_T}, v{r}')
        self.meanstd(40, 42, 2, 44)
        a(f'''
        v_cvt_pk_bf16_f32 v4, v40, v42
        v_cvt_pk_bf16_f32 v5, v41, v43
        s_mov_b64 exec, 15
        global_store_dwordx4 v37, v[4:7], {sp(S_WS)} sc1
        s_mov_b64 exec, -1
        ''')

    def meanstd(self, m, e2, n, t):
        a = self.a
        for k in range(n):
            a(f'v_fma_f32 v{e2 + k}, -v{m + k}, v{m + k}, v{e2 + k}')
        for k in range(n):
            a(f'v_max_f32 v{e2 + k}, 0, v{e2 + k}')
        o = e2 + (1 if n == 2 else 0)
        for add in (True, False):
            a(f'v_cvt_pk_bf16_f32 v{t}, v{e2}, v{o}')
            a(f'v_lshlrev_b32 v{e2}, 16, v{t}')
            if n == 2:
                a(f'v_and_b32 v{o}, 0xffff0000, v{t}')
            for k in range(n):
                a(f'v_add_f32 v{e2 + k}, {fhex(1e-5)}, v{e2 + k}' if add else f'v_sqrt_f32 v{e2 + k}, v{e2 + k}')

    def mod_job(self):
        a = self.a
        a(f'''
        v_lshrrev_b32 v36, 4, v1
        v_bfe_u32 v37, v1, 2, 2
        v_lshl_add_u32 v37, v36, 3, v37
        v_lshlrev_b32 v37, 7, v37
        v_and_b32 v38, 3, v1
        v_lshl_add_u32 v37, v38, 3, v37
        s_lshl_b32 s{S_T}, s{S_V}, 5
        s_add_u32 s{S_T}, s{S_T}, {L_KT}
        v_add_u32 v37, s{S_T}, v37
        v_lshlrev_b32 v36, 4, v36
        v_add_u32 v36, {L_SILU}, v36
        ''')
        toks = []
        for ks in range(4):
            a(f'ds_read_b128 {vr(64 + 8 * ks, 4)}, v36 offset:{64 * ks}')
            a(f'ds_read_b64_tr_b16 {vr(68 + 8 * ks, 2)}, v37 offset:{4096 * ks}')
            toks.append(a(f'ds_read_b64_tr_b16 {vr(70 + 8 * ks, 2)}, v37 offset:{4096 * ks + 512}'))
        a(f'''
        v_lshlrev_b32 v38, 3, v1
        v_add_u32 v39, 4, v38
        s_lshl_b32 s{S_T}, s2, 9
        s_lshl_b32 s{S_T + 1}, s{S_V}, 7
        s_add_u32 s{S_T}, s{S_T}, s{S_T + 1}
        s_add_u32 s{S_T}, s{S_T}, {WS_MODP}
        v_lshl_add_u32 v44, v1, 4, s{S_T}
        ''')
        for ks in range(4):
            a.wait(toks[ks])
            a(f'v_mfma_f32_16x16x32_bf16 v[40:43], {vr(64 + 8 * ks, 4)}, {vr(68 + 8 * ks, 4)}, {"0" if ks == 0 else "v[40:43]"}')
        a(f'''
        ds_bpermute_b32 v4, v38, v40
        ds_bpermute_b32 v5, v39, v40
        s_waitcnt lgkmcnt(0)
        s_mov_b64 exec, 255
        global_store_dwordx4 v44, v[4:7], {sp(S_WS)} sc1
        s_mov_b64 exec, -1
        ''')

    def chains(self):
        a = self.a
        a(f'''
        s_lshl_b32 s{S_T}, s{S_LDTV}, 16
        s_and_b32 s{S_T + 1}, s{S_LDTV}, 0xffff0000
        s_cmp_ge_u32 s{S_U}, 2
        s_cselect_b32 s{S_T}, s{S_T + 1}, s{S_T}
        v_mov_b32 v32, {LOG2E}
        v_mul_f32 v32, s{S_T}, v32
        v_exp_f32 v32, v32
        v_cvt_pk_bf16_f32 v32, v32, v32
        v_and_b32 v32, 0xffff0000, v32
        v_mul_f32 v33, v32, v12
        v_mul_f32 v34, v32, v13
        v_mul_f32 v33, {LOG2E}, v33
        v_mul_f32 v34, 0.15915494, v34
        s_lshr_b32 s{S_T}, s{S_U}, 1
        s_and_b32 s{S_T + 1}, s{S_U}, 1
        s_lshl_b32 s{S_T + 1}, s{S_T + 1}, 8
        ''')

        def qchain():
            a(f's_mul_i32 s{S_T}, s{S_T}, 16896\ns_add_u32 s{S_T}, s{S_T}, s{S_T + 1}\ns_add_u32 m0, s{S_T}, {L_Q}')
            self.cexp(36, 33, 34, 8.0, 38)
            a('v_mov_b32 v44, 0x3f80\nds_write_addtid_b32 v44 offset:0')
            z = 36
            for b in range(1, 32):
                c = 44 + (b & 1)
                a(f'v_cvt_pk_bf16_f32 v{c}, v{z}, v{z + 1}')
                if b < 31:
                    n = 40 + 2 * (b & 1)
                    self.cmul(n, z, 36, 38)
                    z = n
                a(f'ds_write_addtid_b32 v{c} offset:{528 * b}')

        def pchain():
            a(f's_mul_i32 s{S_T}, s{S_T}, 11088\ns_add_u32 s{S_T}, s{S_T}, s{S_T + 1}\ns_add_u32 m0, s{S_T}, {L_P}')
            a('v_mul_f32 v14, v32, v14\nv_mul_f32 v15, v32, v15')
            self.cmul(48, 16, 14, 38)
            self.cexp(36, 33, 34, 1, 38)
            self.cexp(40, 33, 34, 256.0, 38)
            cnt = [0]

            def put(row, z):
                c = 44 + (cnt[0] & 1); cnt[0] += 1
                a(f'v_cvt_pk_bf16_f32 v{c}, v{z}, -v{z + 1}')
                a(f'ds_write_addtid_b32 v{c} offset:{528 * row}')
            put(0, 48)
            for r in range(1, 8):
                self.cmul(48 + 2 * r, 46 + 2 * r, 36, 38)
                put(r, 48 + 2 * r)
            for k in range(4):
                self.cmul(50 + 4 * k, 48 + 4 * k, 40, 38)
                put(8 + k, 50 + 4 * k)
            self.cmul(48, 50, 40, 38); put(12, 48)
            self.cmul(56, 58, 40, 38); put(13, 56)
            self.cmul(50, 48, 40, 38); put(14, 50)
            self.cmul(58, 56, 40, 38); put(15, 58)
            z = 50
            for r in range(16, 21):
                n = 48 if z == 50 else 50
                self.cmul(n, z, 40, 38); put(r, n)
                z = n
        self.cond(f's_cmp_eq_u32 s{S_G}, 0', qchain, pchain)
        a(f'''
        v_and_b32 v36, 15, v1
        v_lshrrev_b32 v37, 4, v1
        v_mul_u32_u24 v38, 528, v36
        v_lshl_add_u32 v38, v37, 4, v38
        s_lshr_b32 s{S_T}, s{S_U}, 1
        s_and_b32 s{S_T + 1}, s{S_U}, 1
        s_mul_i32 s{S_T + 2}, s{S_G}, 11088
        s_mul_i32 s{S_T + 3}, s{S_T}, 8448
        s_add_u32 s{S_T + 2}, s{S_T + 2}, s{S_T + 3}
        v_add_u32 v32, s{S_T + 2}, v38
        s_mul_i32 s{S_T + 2}, s{S_G}, 16896
        s_mul_i32 s{S_T + 3}, s{S_T + 1}, 8448
        s_add_u32 s{S_T + 2}, s{S_T + 2}, s{S_T + 3}
        s_add_u32 s{S_T + 2}, s{S_T + 2}, {L_Q}
        v_add_u32 v33, s{S_T + 2}, v38
        s_cmp_eq_u32 s{S_T}, 0
        s_mov_b32 s{S_T + 2}, 0x41414020
        s_cselect_b32 s{S_T + 2}, 0x10080400, s{S_T + 2}
        s_mov_b32 s{S_T + 3}, 0x01010108
        s_cselect_b32 s{S_T + 3}, 0x04020101, s{S_T + 3}
        v_lshlrev_b32 v37, 3, v37
        v_bfe_u32 v38, s{S_T + 2}, v37, 8
        v_bfe_u32 v39, s{S_T + 3}, v37, 8
        s_mul_i32 s{S_T + 2}, s{S_G}, 9216
        s_lshl_b32 s{S_T + 1}, s{S_T + 1}, 6
        s_add_u32 s{S_T + 2}, s{S_T + 2}, s{S_T + 1}
        s_add_u32 s{S_T + 2}, s{S_T + 2}, {L_KT}
        v_lshl_add_u32 v36, v36, 2, s{S_T + 2}
        v_lshl_add_u32 v44, v38, 7, v36
        v_lshl_add_u32 v45, v39, 7, v44
        v_lshl_add_u32 v46, v39, 7, v45
        v_lshl_add_u32 v47, v39, 7, v46
        ''')
        self.barrier()
        self.stamp(3, 'B2')

    def kprod(self):
        a = self.a
        toks = []
        for ks in range(8):
            a(f'ds_read_b128 {vr(64 + 8 * ks, 4)}, v32 offset:{64 * ks}')
            toks.append(a(f'ds_read_b128 {vr(68 + 8 * ks, 4)}, v33 offset:{64 * ks}'))
        for ks in range(8):
            a.wait(toks[ks])
            a(f'v_mfma_f32_16x16x32_bf16 v[40:43], {vr(64 + 8 * ks, 4)}, {vr(68 + 8 * ks, 4)}, {"0" if ks == 0 else "v[40:43]"}')
        a(f'''
        v_and_b32 v36, 255, v0
        s_mul_i32 s{S_T}, s{S_G}, 16640
        v_lshl_add_u32 v32, v36, 4, s{S_T}
        v_bfe_u32 v36, v1, 1, 3
        v_mul_u32_u24 v36, 4160, v36
        v_and_b32 v37, 1, v1
        v_lshl_add_u32 v33, v37, 4, v36
        ''')
        for i in range(4):
            a(f'ds_write_b32 v{44 + i}, v{40 + i}')
        self.barrier()
        self.stamp(4, 'B3')

    def s1_issue(self):
        a = self.a
        a(f'global_load_dwordx4 v[32:35], v12, {sp(S_WS)} sc1')
        a(f'global_load_dwordx4 v[36:39], v13, {sp(S_WS)} sc1')
        a(f'global_load_dwordx4 v[40:43], v14, {sp(S_WS)} sc1')
        a(f'global_load_dwordx4 v[44:47], v14, {sp(S_WS)} offset:16 sc1')
        return a(f'global_load_dwordx4 v[48:51], v15, {sp(S_WS)} sc1')

    def expand(self):
        a = self.a
        for k in range(11):
            t = a(f'ds_read_b32 v{64 + k}, v{20 + k}')
        a(f'''
        v_lshrrev_b32 v36, 2, v0
        v_lshlrev_b32 v36, 15, v36
        v_and_b32 v37, 3, v1
        v_lshl_add_u32 v36, v37, 4, v36
        s_lshl_b32 s{S_T}, s{S_P}, 6
        s_add_u32 s{S_T}, s{S_T}, {WS_XT}
        v_add_u32 v12, s{S_T}, v36
        v_add_u32 v13, 16384, v12
        v_lshlrev_b32 v14, 5, v0
        v_add_u32 v14, {WS_ST1}, v14
        v_bfe_u32 v36, v1, 2, 2
        v_cmp_eq_u32 vcc, 3, v36
        v_addc_co_u32 v36, vcc, 0, v36, vcc
        v_lshlrev_b32 v36, 14, v36
        v_lshl_add_u32 v36, v37, 9, v36
        s_lshl_b32 s{S_T}, s{S_XCD}, 11
        s_lshl_b32 s{S_T + 1}, s{S_IDX}, 4
        s_add_u32 s{S_T}, s{S_T}, s{S_T + 1}
        s_add_u32 s{S_T}, s{S_T}, {WS_MODP}
        v_add_u32 v15, s{S_T}, v36
        v_mov_b32 v96, 0
        v_mov_b32 v97, 0
        v_mov_b32 v98, 0
        v_mov_b32 v99, 0
        ''')
        a(f'ds_write_b128 v33, v[96:99] offset:{L_CP + 4096}')
        a.wait(t)
        for c in range(4):
            for k in range(4):
                lo = c - 2 * k + 7
                a(f'v_cvt_pk_bf16_f32 v{80 + 4 * c + k}, v{64 + lo}, v{64 + lo - 1}')
            a(f'ds_write_b128 v32, {vr(80 + 4 * c, 4)} offset:{L_CP + 4160 * c}')
        a(f'''
        v_and_b32 v36, 3, v1
        v_mul_u32_u24 v36, 4160, v36
        v_lshrrev_b32 v37, 4, v1
        v_lshl_add_u32 v36, v37, 4, v36
        v_bfe_u32 v38, v1, 2, 2
        v_lshlrev_b32 v38, 3, v38
        v_sub_u32 v36, v36, v38
        s_lshr_b32 s{S_T}, s{S_U}, 1
        s_lshl_b32 s{S_T + 1}, s{S_T}, 8
        s_mul_i32 s{S_T + 2}, s{S_G}, 16640
        s_sub_u32 s{S_T + 2}, s{S_T + 2}, s{S_T + 1}
        s_add_u32 s{S_T + 2}, s{S_T + 2}, {L_CP + 280}
        v_add_u32 v24, s{S_T + 2}, v36
        v_and_b32 v36, 15, v1
        v_lshlrev_b32 v38, 5, v36
        v_lshl_add_u32 v38, v37, 4, v38
        s_mul_i32 s{S_T + 2}, s{S_G}, 4608
        s_sub_u32 s{S_T + 2}, s{S_T + 2}, s{S_T + 1}
        s_add_u32 s{S_T + 2}, s{S_T + 2}, {L_H + 288}
        v_add_u32 v25, s{S_T + 2}, v38
        v_lshl_add_u32 v36, v37, 2, v36
        v_and_b32 v36, 15, v36
        v_lshl_add_u32 v36, v37, 4, v36
        s_lshr_b32 s{S_T + 2}, s{S_V}, 1
        s_lshl_b32 s{S_T + 2}, s{S_T + 2}, 12
        s_add_u32 s{S_T + 2}, s{S_T + 2}, {L_PART}
        v_lshl_add_u32 v26, v36, 4, s{S_T + 2}
        v_lshrrev_b32 v36, 2, v1
        v_and_b32 v37, 3, v1
        v_lshl_add_u32 v36, v37, 2, v36
        v_and_b32 v36, 15, v36
        v_lshl_add_u32 v36, v37, 4, v36
        s_lshl_b32 s{S_T + 2}, s{S_U}, 10
        s_add_u32 s{S_T + 2}, s{S_T + 2}, {L_PART}
        v_lshl_add_u32 v27, v36, 4, s{S_T + 2}
        v_lshlrev_b32 v28, 3, v0
        v_add_u32 v28, {L_H + 512}, v28
        v_lshrrev_b32 v36, 3, v0
        v_lshlrev_b32 v36, 15, v36
        v_and_b32 v37, 7, v1
        v_lshl_add_u32 v36, v37, 4, v36
        s_lshl_b32 s{S_T + 2}, s{S_P}, 7
        s_add_u32 s{S_T + 2}, s{S_T + 2}, {WS_X1}
        v_add_u32 v29, s{S_T + 2}, v36
        v_add_u32 v30, {WS_X1S - WS_X1}, v29
        ''')
        self.barrier()
        self.stamp(5, 'B4')

    def afrags(self):
        a = self.a
        for m in range(8):
            for dl in range(4):
                r = 128 + (dl * 8 + m) * 4
                off = 2 * (1888 - 256 * m - 32 * dl)
                a(f'ds_read_b64 {vr(r, 2)}, v24 offset:{off}')
                a(f'ds_read_b64 {vr(r + 2, 2)}, v24 offset:{off + 8}')

    def hbuild(self, tok):
        a = self.a
        self.poll(self.s1_issue, [34, 38, 42, 46, 50], tok)
        for q in ('[1,0,3,2]', '[2,3,0,1]'):
            for r in (48, 49):
                a(f'v_add_f32_dpp v{r}, v{r}, v{r} quad_perm:{q} row_mask:0xf bank_mask:0xf')
        a(f'''
        v_cvt_pk_bf16_f32 v50, v48, v49
        v_bfe_u32 v51, v1, 2, 1
        v_cvt_f32_u32 v51, v51
        v_lshlrev_b32 v48, 16, v50
        v_and_b32 v49, 0xffff0000, v50
        v_add_f32 v48, v48, v51
        v_add_f32 v49, v49, v51
        v_cvt_pk_bf16_f32 v50, v48, v49
        s_mov_b32 vcc_lo, 0x33333333
        s_mov_b32 vcc_hi, 0x33333333
        v_cndmask_b32_dpp v4, v36, v32, vcc quad_perm:[2,3,0,1] row_mask:0xf bank_mask:0xf bound_ctrl:0
        v_cndmask_b32_dpp v5, v37, v33, vcc quad_perm:[2,3,0,1] row_mask:0xf bank_mask:0xf bound_ctrl:0
        s_not_b64 vcc, vcc
        v_cndmask_b32_dpp v6, v32, v36, vcc quad_perm:[2,3,0,1] row_mask:0xf bank_mask:0xf bound_ctrl:0
        v_cndmask_b32_dpp v7, v33, v37, vcc quad_perm:[2,3,0,1] row_mask:0xf bank_mask:0xf bound_ctrl:0
        ''')
        for k in range(4):
            a(f'v_readlane_b32 s{S_MOD + 2 * k + 1}, v50, {4 * k}')
        st = (40, 41, 44, 45)
        for i in range(4):
            a(f'v_and_b32 v{53 + 2 * i}, 0xffff0000, v{st[i]}')
            a(f'v_lshlrev_b32 v{52 + 2 * i}, 16, v{st[i]}')
            a(f'v_rcp_f32 v{53 + 2 * i}, v{53 + 2 * i}')
        a(f's_mov_b32 s{S_MOD + 9}, s{S_DSKV}')
        for k in range(5):
            a(f's_lshl_b32 s{S_MOD + 2 * k}, s{S_MOD + 2 * k + 1}, 16')
            a(f's_and_b32 s{S_MOD + 2 * k + 1}, s{S_MOD + 2 * k + 1}, 0xffff0000')
        a(f'v_mov_b32 v48, s{S_MOD}\nv_mov_b32 v49, s{S_MOD + 1}')
        for i in range(4):
            x = 32 + 2 * i
            a(f'v_lshlrev_b32 v{x}, 16, v{4 + i}\nv_and_b32 v{x + 1}, 0xffff0000, v{4 + i}')
        for i in range(4):
            x = 32 + 2 * i
            a(f'v_pk_add_f32 {vr(x, 2)}, {vr(x, 2)}, {vr(52 + 2 * i, 2)} op_sel:[0,0] op_sel_hi:[1,0] neg_lo:[0,1] neg_hi:[0,1]')
        for i in range(4):
            x = 32 + 2 * i
            a(f'v_pk_mul_f32 {vr(x, 2)}, {vr(x, 2)}, {vr(52 + 2 * i, 2)} op_sel:[0,1] op_sel_hi:[1,1]')
        for i in range(4):
            x = 32 + 2 * i
            a(f'v_pk_fma_f32 {vr(x, 2)}, {vr(x, 2)}, {sp(S_MOD + 2)}, v[48:49]')
        for ch in range(2):
            a(f'v_cvt_pk_bf16_f32 v{8 + 2 * ch}, v{32 + ch}, v{34 + ch}')
            a(f'v_cvt_pk_bf16_f32 v{9 + 2 * ch}, v{36 + ch}, v{38 + ch}')
            a(f'ds_write_b64 v28, {vr(8 + 2 * ch, 2)} offset:{4608 * ch}')

    def conv_h0(self, ts):
        a = self.a
        lo, hi = ts, 3 - ts
        toks = {}
        for dl in range(4):
            for mp in range(4):
                toks[dl, mp] = a(f'ds_read_b128 {vr(64 + (dl * 4 + mp) * 4, 4)}, v25 offset:{192 - 64 * dl + 512 * mp}')
        first = {lo: True, hi: True}
        for dl in range(4):
            for mp in range(4):
                for jt, acc in ((hi, 20), (lo, 16)):
                    m = jt - mp
                    if m < 0:
                        continue
                    a.wait(toks[dl, mp])
                    c = '0' if first[jt] else vr(acc, 4)
                    first[jt] = False
                    a(f'v_mfma_f32_16x16x32_bf16 {vr(acc, 4)}, {vr(128 + (dl * 8 + m) * 4, 4)}, {vr(64 + (dl * 4 + mp) * 4, 4)}, {c}')
        a(f'ds_write_b128 v26, v[16:19] offset:{1024 * lo}')
        a(f'ds_write_b128 v26, v[20:23] offset:{1024 * hi}')

    def conv_h1(self, ts, hooks):
        a = self.a
        lo, hi = 4 + ts, 7 - ts
        toks = {}

        def rd(dl):
            for mp in range(4, hi + 1):
                toks[dl, mp] = a(f'ds_read_b128 {vr(32 + ((dl & 1) * 4 + mp - 4) * 4, 4)}, v25 offset:{192 - 64 * dl + 512 * mp}')
        rd(0); rd(1)
        first = {lo: True, hi: True}
        for dl in range(4):
            for mp in range(hi + 1):
                for jt, acc in ((hi, 20), (lo, 16)):
                    m = jt - mp
                    if m < 0:
                        continue
                    if mp >= 4:
                        a.wait(toks[dl, mp])
                        b = 32 + ((dl & 1) * 4 + mp - 4) * 4
                    else:
                        b = 64 + (dl * 4 + mp) * 4
                    c = '0' if first[jt] else vr(acc, 4)
                    first[jt] = False
                    a(f'v_mfma_f32_16x16x32_bf16 {vr(acc, 4)}, {vr(128 + (dl * 8 + m) * 4, 4)}, {vr(b, 4)}, {c}')
            if dl + 2 < 4:
                rd(dl + 2)
            if dl in hooks:
                hooks[dl]()
        a(f'ds_write_b128 v26, v[16:19] offset:{1024 * (lo - 4)}')
        a(f'ds_write_b128 v26, v[20:23] offset:{1024 * (hi - 4)}')

    def conv_epi(self):
        a = self.a
        toks = [a(f'ds_read_b128 {vr(32 + 4 * k, 4)}, v27 offset:{4096 * k}') for k in range(4)]
        for ch in range(2):
            for j in range(2):
                a(f'v_lshlrev_b32 v{48 + 4 * ch + 2 * j}, 16, v{8 + 2 * ch + j}')
                a(f'v_and_b32 v{49 + 4 * ch + 2 * j}, 0xffff0000, v{8 + 2 * ch + j}')
        for i in range(4):
            a(f'v_lshlrev_b32 v{56 + i}, 16, v{4 + i}\nv_and_b32 v{60 + i}, 0xffff0000, v{4 + i}')
        for ch in range(2):
            a.wait(toks[2 * ch + 1])
            sel = f'op_sel:[0,{ch},0] op_sel_hi:[1,{ch},1]'
            for j in range(2):
                y = 32 + 8 * ch + 2 * j
                a(f'v_pk_add_f32 {vr(y, 2)}, {vr(y, 2)}, {vr(y + 4, 2)}')
            for j in range(2):
                y = 32 + 8 * ch + 2 * j
                a(f'v_pk_fma_f32 {vr(y, 2)}, {vr(48 + 4 * ch + 2 * j, 2)}, {sp(S_MOD + 8)}, {vr(y, 2)} {sel}')
            for j in range(2):
                y = 32 + 8 * ch + 2 * j
                a(f'v_pk_fma_f32 {vr(y, 2)}, {vr(y, 2)}, {sp(S_MOD + 4)}, {vr(56 + 4 * ch + 2 * j, 2)} {sel}')
            for j in range(2):
                y = 32 + 8 * ch + 2 * j
                a(f'v_pk_mul_f32 {vr(y + 4, 2)}, {vr(y, 2)}, {sp(S_MOD + 6)} op_sel:[0,{ch}] op_sel_hi:[1,{ch}]')
        for i in range(4):
            a(f'v_cvt_pk_bf16_f32 v{8 + i}, v{36 + i}, v{44 + i}')
        a(f'global_store_dwordx4 v30, v[8:11], {sp(S_WS)} sc1')
        for i in range(4):
            a(f'v_cvt_pk_bf16_f32 v{4 + i}, v{32 + i}, v{40 + i}')
        return a(f'global_store_dwordx4 v29, v[4:7], {sp(S_WS)} sc1')

    def flag(self, sreg_off, va, vd):
        self.a(f'''
        v_mov_b32 v{va}, s{sreg_off}
        v_mov_b32 v{vd}, s{S_TAG}
        v_mov_b32 v{vd + 1}, s{S_TAG + 1}
        s_mov_b64 exec, 1
        global_store_dwordx2 v{va}, {vr(vd, 2)}, {sp(S_WS)} sc1
        s_mov_b64 exec, -1
        ''')

    def flag2(self):
        a = self.a
        a(f'''
        s_lshl_b32 s{S_T}, s{S_V}, 12
        s_lshl_b32 s{S_T + 1}, s{S_P}, 4
        s_add_u32 s{S_T}, s{S_T}, s{S_T + 1}
        s_add_u32 s{S_T}, s{S_T}, {WS_F2}
        ''')
        self.flag(S_T, 13, 14)

    def sv_issue(self):
        a = self.a
        for k in range(8):
            t = a(f'global_load_dwordx4 {vr(128 + 4 * k, 4)}, v{12 if k < 4 else 31}, {sp(S_WS)} offset:{512 * (k & 3)} sc1')
        return t

    def sv_build(self, tok):
        a = self.a
        self.poll(self.sv_issue, [130 + 4 * k for k in range(8)], tok)
        for b in (128, 144):
            a(f'v_pk_add_f32 {vr(b, 2)}, {vr(b, 2)}, {vr(b + 4, 2)}')
            a(f'v_pk_add_f32 {vr(b + 8, 2)}, {vr(b + 8, 2)}, {vr(b + 12, 2)}')
            a(f'v_pk_add_f32 {vr(b, 2)}, {vr(b, 2)}, {vr(b + 8, 2)}')
            a(f'v_cvt_pk_bf16_f32 v{b}, v{b}, v{b + 1}')
        a(f'''
        v_lshlrev_b32 v146, 16, v144
        v_and_b32 v147, 0xffff0000, v144
        v_add_f32 v146, 1.0, v146
        v_add_f32 v147, 1.0, v147
        v_cvt_pk_bf16_f32 v144, v146, v147
        v_lshlrev_b32 v146, 2, v0
        v_add_u32 v146, {L_SV}, v146
        ds_write_b32 v146, v144
        ds_write_b32 v146, v128 offset:1024
        ''')

    def cfrags(self):
        a = self.a
        a(f'''
        v_lshrrev_b32 v8, 4, v1
        v_bfe_u32 v9, v1, 2, 2
        v_and_b32 v10, 1, v8
        v_lshrrev_b32 v11, 1, v9
        v_lshl_add_u32 v10, v10, 1, v11
        v_xor_b32 v10, s{S_U}, v10
        v_lshlrev_b32 v11, 11, v8
        v_lshl_add_u32 v11, v9, 7, v11
        v_lshl_add_u32 v11, v10, 5, v11
        v_lshl_add_u32 v12, v7, 3, v11
        v_xor_b32 v13, 64, v12
        v_add_u32 v13, 1024, v13
        v_and_b32 v10, 1, v1
        v_lshlrev_b32 v10, 10, v10
        v_lshl_add_u32 v10, v8, 4, v10
        v_add_u32 v14, {L_SV}, v10
        ''')
        toks = {}

        def rd(k):
            b = 72 + 12 * (k % 3)
            if k == 8:
                a('v_add_u32 v12, 0x10000, v12\nv_add_u32 v13, 0x10000, v13')
            a(f'ds_read_b128 {vr(b, 4)}, v14 offset:{64 * k}')
            for mat in range(2):
                for hf in range(2):
                    toks[k, mat] = a(f'ds_read_b64_tr_b16 {vr(b + 4 + 4 * mat + 2 * hf, 2)}, v{12 + mat} offset:{8192 * (k & 7) + 512 * hf}')
        rd(0); rd(1)
        for k in range(16):
            if k + 2 < 16:
                rd(k + 2)
            b = 72 + 12 * (k % 3)
            for mat in range(2):
                a.wait(toks[k, mat])
                acc = vr(16 + 4 * mat, 4)
                a(f'v_mfma_f32_16x16x32_bf16 {acc}, {vr(b, 4)}, {vr(b + 4 + 4 * mat, 4)}, {"0" if k == 0 else acc}')
        a(f'''
        s_mov_b32 vcc_lo, 0xffff0000
        s_mov_b32 vcc_hi, 0xffff0000
        s_lshl_b32 s{S_T}, s{S_U}, 10
        s_add_u32 s{S_T}, s{S_T}, {L_CF}
        v_lshl_add_u32 v15, v1, 4, s{S_T}
        s_mov_b32 s{S_T}, 0x05040100
        s_mov_b32 s{S_T + 1}, 0x07060302
        s_mov_b32 s{S_T + 2}, 0x07060100
        v_cndmask_b32 v16, v16, v20, vcc
        v_cndmask_b32 v17, v17, v21, vcc
        v_cvt_pk_bf16_f32 v24, v16, v17
        v_lshlrev_b32 v18, 16, v24
        v_and_b32 v19, 0xffff0000, v24
        v_sub_f32 v16, v16, v18
        v_sub_f32 v17, v17, v19
        v_cvt_pk_bf16_f32 v25, v16, v17
        v_lshlrev_b32 v18, 16, v25
        v_and_b32 v19, 0xffff0000, v25
        v_sub_f32 v16, v16, v18
        v_sub_f32 v17, v17, v19
        v_cvt_pk_bf16_f32 v26, v16, v17
        v_perm_b32 v20, v25, v24, s{S_T}
        v_perm_b32 v21, v24, v26, s{S_T + 2}
        v_perm_b32 v22, v26, v25, s{S_T + 1}
        v_mov_b32 v23, 0
        s_mov_b32 exec_lo, 0
        v_mov_b32 v20, 0
        v_mov_b32 v21, 0
        v_mov_b32 v22, 0
        s_mov_b32 exec_lo, -1
        ds_write_b128 v15, v[20:23]
        ''')

    def f2_addr(self):
        a = self.a
        a(f'''
        s_lshr_b32 s{S_T}, s{S_RG1}, 3
        s_lshl_b32 s{S_T}, s{S_T}, 12
        s_add_u32 s{S_T}, s{S_T}, {WS_F2}
        v_lshl_add_u32 v70, v1, 4, s{S_T}
        ''')

    def f2_issue(self):
        for k in range(4):
            t = self.a(f'global_load_dwordx2 {vr(60 + 2 * k, 2)}, v70, {sp(S_WS)} offset:{1024 * k} sc1')
        return t

    def g1_addr(self):
        self.a(f'''
        v_lshrrev_b32 v8, 5, v1
        v_bfe_u32 v9, v1, 4, 1
        v_bfe_u32 v10, v1, 2, 2
        v_xor_b32 v11, v8, v9
        v_lshrrev_b32 v2, 1, v10
        v_lshl_add_u32 v11, v11, 1, v2
        v_lshlrev_b32 v2, 11, v8
        v_lshl_add_u32 v2, v9, 10, v2
        v_lshl_add_u32 v2, v10, 7, v2
        v_lshl_add_u32 v2, v11, 5, v2
        v_and_b32 v9, 1, v1
        v_bfe_u32 v10, v1, 1, 1
        v_lshl_or_b32 v7, v9, 1, v10
        v_lshl_add_u32 v2, v7, 3, v2
        v_xor_b32 v3, 32, v2
        v_xor_b32 v4, 64, v2
        v_xor_b32 v5, 0x60, v2
        v_and_b32 v9, 31, v1
        v_lshlrev_b32 v9, 2, v9
        v_lshl_add_u32 v9, v8, 9, v9
        s_lshl_b32 s{S_T}, s{S_RG1}, 15
        s_add_u32 s{S_T}, s{S_T}, {WS_X1S + 4096}
        v_add_u32 v6, s{S_T}, v9
        ''')

    def xload(self, ks, j):
        if ks and ks % 8 == 0 and j == 0:
            self.a('v_add_u32 v6, 8192, v6')
        return self.a(f'global_load_dword v{8 + 4 * (ks % 8) + j}, v6, {sp(S_WS)} offset:{1024 * (ks % 8) + 128 * j - 4096} sc1')

    def g1_start(self):
        a = self.a
        a(f's_and_b32 s{S_T + 6}, s{S_NB1}, 3')

        def jobload():
            a(f'''
            s_lshl_b32 s{S_T}, s{S_RG1}, 15
            s_lshr_b32 s{S_T + 1}, s{S_NB1}, 2
            s_lshl_b32 s{S_T + 1}, s{S_T + 1}, 12
            s_add_u32 s{S_T}, s{S_T}, s{S_T + 1}
            s_add_u32 s{S_T}, s{S_T}, {WS_X1}
            v_lshl_add_u32 v70, v1, 4, s{S_T}
            ''')
            for k in range(4):
                a(f'global_load_dwordx4 {vr(40 + 4 * k, 4)}, v70, {sp(S_WS)} offset:{1024 * k} sc1')
        self.cond(f's_cmp_eq_u32 s{S_T + 6}, s{S_U}', jobload)
        self.xt = {}
        for ks in range(7):
            for j in range(4):
                self.xt[ks] = self.xload(ks, j)

        def job():
            a(f'''
            s_lshl_b32 s{S_T}, s{S_RG1}, 12
            s_lshr_b32 s{S_T + 1}, s{S_NB1}, 2
            s_lshl_b32 s{S_T + 1}, s{S_T + 1}, 9
            s_add_u32 s{S_T}, s{S_T}, s{S_T + 1}
            s_add_u32 s{S_T}, s{S_T}, {WS_ST2}
            v_lshrrev_b32 v68, 4, v1
            v_and_b32 v69, 7, v1
            v_lshl_add_u32 v68, v68, 3, v69
            v_lshl_add_u32 v70, v68, 4, s{S_T}
            s_mov_b32 s{S_T}, {ONES}
            v_mov_b32 v66, s{S_TAG}
            v_mov_b32 v67, s{S_TAG + 1}
            s_waitcnt vmcnt(28)
            ''')
            for k in range(4):
                for i in range(4):
                    x = 40 + 4 * k + i
                    a(f'v_dot2_f32_bf16 v{56 + i}, v{x}, s{S_T}, {"0" if k == 0 else "v%d" % (56 + i)}')
                    a(f'v_dot2_f32_bf16 v{60 + i}, v{x}, v{x}, {"0" if k == 0 else "v%d" % (60 + i)}')
            for b in (56, 60):
                a(f'v_permlane32_swap_b32 v{b}, v{b + 2}\nv_permlane32_swap_b32 v{b + 1}, v{b + 3}')
            for b in (56, 60):
                a(f'v_add_f32 v{b}, v{b}, v{b + 2}\nv_add_f32 v{b + 1}, v{b + 1}, v{b + 3}')
            for b in (56, 60):
                a(f'v_permlane16_swap_b32 v{b}, v{b + 1}')
            a(f'''
            v_add_f32 v64, v56, v57
            v_add_f32 v65, v60, v61
            v_add_f32_dpp v64, v64, v64 row_ror:8 row_mask:0xf bank_mask:0xf
            v_add_f32_dpp v65, v65, v65 row_ror:8 row_mask:0xf bank_mask:0xf
            s_mov_b32 exec_lo, 0x00ff00ff
            s_mov_b32 exec_hi, 0x00ff00ff
            global_store_dwordx4 v70, v[64:67], {sp(S_WS)} sc1
            s_mov_b64 exec, -1
            ''')
        self.cond(f's_cmp_eq_u32 s{S_T + 6}, s{S_U}', job)

    def st2_issue(self):
        for k in range(4):
            t = self.a(f'global_load_dwordx4 {vr(8 + 4 * k, 4)}, v6, {sp(S_WS)} offset:{512 * k} sc1')
        return t

    def g1_main(self, nt):
        a = self.a
        xt = dict(self.xt)
        wt = {}

        def wread(ks, s):
            if ks == 16:
                a(f'v_add_u32 v{2 + s}, 0x10000, v{2 + s}')
            b = 40 + 16 * (ks & 1) + 4 * s
            a(f'ds_read_b64_tr_b16 {vr(b, 2)}, v{2 + s} offset:{4096 * (ks & 15)}')
            wt[ks, s] = a(f'ds_read_b64_tr_b16 {vr(b + 2, 2)}, v{2 + s} offset:{4096 * (ks & 15) + 512}')
        for s in range(nt):
            wread(0, s)
        spread = [[0], [1], [2], [3]] if nt == 4 else [[0, 1], [2], [3]]
        ts2 = None
        for ks in range(32):
            for s in range(nt):
                a.wait(*([xt[ks]] if s == 0 else []), wt[ks, s])
                acc = vr(72 + 16 * s, 16)
                a(f'v_mfma_f32_32x32x16_bf16 {acc}, {vr(40 + 16 * (ks & 1) + 4 * s, 4)}, {vr(8 + 4 * (ks % 8), 4)}, {"0" if ks == 0 else acc}')
                if ks + 1 < 32:
                    wread(ks + 1, s)
                else:
                    wt[32, s] = a(f'ds_read_b128 {vr(40 + 4 * s, 4)}, v7 offset:{1024 * s}')
                if ks + 7 < 32:
                    for j in spread[s]:
                        xt[ks + 7] = self.xload(ks + 7, j)
                if ks == 26 and s == 0:
                    a(f'''
                    v_and_b32 v6, 3, v1
                    v_bfe_u32 v7, v1, 2, 3
                    v_lshl_add_u32 v6, v6, 3, v7
                    v_lshrrev_b32 v7, 5, v1
                    v_lshl_add_u32 v6, v7, 7, v6
                    ''')
                if ks == 26 and s == 1:
                    a(f'''
                    s_lshl_b32 s{S_T}, s{S_RG1}, 12
                    s_add_u32 s{S_T}, s{S_T}, {WS_ST2}
                    v_lshl_add_u32 v6, v6, 4, s{S_T}
                    v_lshlrev_b32 v7, 4, v1
                    v_add_u32 v7, {L_CF}, v7
                    ''')
                if ks == 28 and s == 0:
                    ts2 = self.st2_issue()
        self.stamp(11, 'g1 loop')
        self.poll(self.st2_issue, [10, 14, 18, 22], ts2)
        a(f'''
        v_pk_add_f32 v[8:9], v[8:9], v[12:13]
        v_pk_add_f32 v[16:17], v[16:17], v[20:21]
        v_pk_add_f32 v[8:9], v[8:9], v[16:17]
        s_mov_b32 s{S_T}, {fhex(1 / 512)}
        v_mov_b32 v10, v8
        v_mov_b32 v11, v9
        v_permlane32_swap_b32 v8, v10
        v_permlane32_swap_b32 v9, v11
        v_add_f32 v8, v8, v10
        v_add_f32 v9, v9, v11
        v_mul_f32 v8, s{S_T}, v8
        v_mul_f32 v9, s{S_T}, v9
        ''')
        self.meanstd(8, 9, 1, 10)
        a(f'''
        v_cvt_pk_bf16_f32 v12, -v8, -v8
        v_cvt_pk_bf16_f32 v13, -v8, v9
        v_cvt_pk_bf16_f32 v14, v9, v9
        v_mov_b32 v15, 0
        v_and_b32 v16, 0xffff0000, v14
        v_rcp_f32 v16, v16
        ''')
        for s in range(nt):
            a.wait(wt[32, s])
            acc = vr(72 + 16 * s, 16)
            a(f'v_mfma_f32_32x32x16_bf16 {acc}, {vr(40 + 4 * s, 4)}, v[12:15], {acc}')
        a(f'''
        v_mul_f32 v16, v16, v16
        s_mul_i32 s{S_T}, s{S_RG1}, 114688
        s_lshr_b32 s{S_T + 1}, s{S_NB1}, 1
        s_mul_i32 s{S_T + 1}, s{S_T + 1}, 7168
        s_add_u32 s{S_T}, s{S_T}, s{S_T + 1}
        s_add_u32 s{S_T}, s{S_T}, {WS_HH}
        v_lshl_add_u32 v18, v1, 4, s{S_T}
        s_lshl_b32 s{S_T + 1}, s{S_ODD}, 12
        v_add_u32 v17, s{S_T + 1}, v18
        ''')
        for s in range(nt):
            b = 72 + 16 * s
            for j in range(4):
                a(f'v_pk_mul_f32 {vr(b + 2 * j, 2)}, {vr(b + 2 * j, 2)}, {vr(b + 8 + 2 * j, 2)}')
            for j in range(4):
                a(f'v_pk_mul_f32 {vr(b + 2 * j, 2)}, {vr(b + 2 * j, 2)}, v[16:17] op_sel:[0,0] op_sel_hi:[1,0]')
            for j in range(4):
                a(f'v_cvt_pk_bf16_f32 v{b + 8 + j}, v{b + 2 * j}, v{b + 2 * j + 1}')
            a(f'global_store_dwordx4 v{17 if s < 3 else 18}, {vr(b + 8, 4)}, {sp(S_WS)} offset:{1024 * s} sc1')

    def flag3(self):
        a = self.a
        a(f'''
        s_lshl_b32 s{S_T}, s{S_RG1}, 9
        s_lshl_b32 s{S_T + 1}, s{S_NB1}, 4
        s_add_u32 s{S_T}, s{S_T}, s{S_T + 1}
        s_add_u32 s{S_T}, s{S_T}, {WS_F3}
        ''')
        self.flag(S_T, 67, 68)

    def wd_load(self, va):
        a = self.a
        a(f'''
        v_lshrrev_b32 v{va}, 5, v1
        v_lshlrev_b32 v{va}, 13, v{va}
        v_and_b32 v{va + 1}, 31, v1
        v_lshl_add_u32 v{va}, v{va + 1}, 2, v{va}
        s_mul_i32 s{S_T}, s{S_V}, {224 * 1024}
        s_lshl_b32 s{S_T + 1}, s{S_DB}, 7
        s_add_u32 s{S_T}, s{S_T}, s{S_T + 1}
        s_add_u32 s{S_T}, s{S_T}, 4096
        v_add_u32 v{va}, s{S_T}, v{va}
        s_mov_b32 s{S_T + 8}, 0x05040100
        s_mov_b32 s{S_T + 9}, 0x07060302
        ''')
        toks = {}

        def ld(s):
            for j in range(8):
                toks[s] = a(f'global_load_dword v{144 + 8 * s + j}, v{va}, {sp(S_WD)} offset:{1024 * j - 4096}')
            a(f'v_add_u32 v{va}, 16384, v{va}')

        def pm(s):
            a.wait(toks[s])
            src, dst = 144 + 8 * s, 136 + 8 * s
            for jj in range(4):
                a(f'v_perm_b32 v{dst + jj}, v{src + 2 * jj + 1}, v{src + 2 * jj}, s{S_T + 8}')
                a(f'v_perm_b32 v{dst + 4 + jj}, v{src + 2 * jj + 1}, v{src + 2 * jj}, s{S_T + 9}')
        for s in range(7):
            ld(s)
        for s in range(14):
            pm(s)
            if s + 7 < 14:
                ld(s + 7)

    def gb_issue(self):
        for k in range(4):
            t = self.a(f'global_load_dwordx4 {vr(8 + 4 * k, 4)}, v24, {sp(S_WS)} offset:{512 * k} sc1')
        return t

    def gb_build(self):
        a = self.a
        a(f'''
        s_add_u32 s{S_T}, s{S_DB}, 40
        s_lshl_b32 s{S_T}, s{S_T}, 11
        s_add_u32 s{S_T}, s{S_T}, {WS_MODP}
        v_and_b32 v25, 31, v1
        v_lshl_add_u32 v24, v25, 4, s{S_T}
        ''')
        t = self.gb_issue()
        self.poll(self.gb_issue, [10, 14, 18, 22], t)
        a(f'''
        v_pk_add_f32 v[8:9], v[8:9], v[12:13]
        v_pk_add_f32 v[16:17], v[16:17], v[20:21]
        v_pk_add_f32 v[8:9], v[8:9], v[16:17]
        v_cvt_pk_bf16_f32 v10, v8, v9
        v_lshlrev_b32 v8, 16, v10
        v_and_b32 v9, 0xffff0000, v10
        v_lshlrev_b32 v25, 3, v25
        v_add_u32 v25, {L_GB}, v25
        ds_write_b64 v25, v[8:9]
        ''')

    def g2_addr(self):
        self.a(f'''
        s_lshl_b32 s{S_T}, s{S_RG2}, 9
        s_lshl_b32 s{S_T + 1}, s{S_V}, 6
        s_add_u32 s{S_T}, s{S_T}, s{S_T + 1}
        s_add_u32 s{S_T}, s{S_T}, {WS_F3}
        v_and_b32 v2, 3, v1
        v_lshl_add_u32 v2, v2, 4, s{S_T}
        s_mul_i32 s{S_T}, s{S_RG2}, 114688
        s_mul_i32 s{S_T + 1}, s{S_V}, 14336
        s_add_u32 s{S_T}, s{S_T}, s{S_T + 1}
        s_add_u32 s{S_T}, s{S_T}, {WS_HH + 4096}
        v_lshl_add_u32 v3, v1, 4, s{S_T}
        v_add_u32 v4, 8192, v3
        s_lshl_b32 s{S_T}, s{S_RG2}, 15
        s_lshl_b32 s{S_T + 1}, s{S_DB}, 12
        s_add_u32 s{S_T}, s{S_T}, s{S_T + 1}
        s_add_u32 s{S_T}, s{S_T}, {WS_X1}
        v_and_b32 v5, 255, v0
        v_lshl_add_u32 v5, v5, 4, s{S_T}
        v_and_b32 v6, 15, v1
        v_lshrrev_b32 v7, 5, v1
        v_lshlrev_b32 v7, 1, v7
        v_xor_b32 v6, v6, v7
        v_and_b32 v7, 31, v1
        v_lshlrev_b32 v7, 8, v7
        v_lshl_add_u32 v6, v6, 4, v7
        s_lshl_b32 s{S_T}, s{S_V}, 13
        v_add_u32 v6, s{S_T}, v6
        v_lshrrev_b32 v64, 4, v0
        v_xor_b32 v7, v64, v1
        v_and_b32 v7, 15, v7
        v_lshlrev_b32 v7, 4, v7
        v_lshl_add_u32 v7, v64, 8, v7
        ''')

    def f3_issue(self):
        return self.a(f'global_load_dwordx2 v[70:71], v2, {sp(S_WS)} sc1')

    def g2_mma(self, half, tok):
        a = self.a
        self.poll(self.f3_issue, [70], tok)
        self.stamp(13 + 2 * half, f'f3 h{half}')
        toks = []
        for s in range(14):
            toks.append(a(f'global_load_dwordx4 {vr(8 + 4 * s, 4)}, v{3 + s // 8}, {sp(S_WS)} offset:{1024 * (s % 8) - 4096} sc1'))
        tr = a(f'global_load_dwordx4 v[64:67], v5, {sp(S_WS)} sc1')
        if half == 0:
            a(f'''
            v_add_u32 v2, {32 * 512}, v2
            v_add_u32 v3, {32 * 114688}, v3
            v_add_u32 v4, {32 * 114688}, v4
            v_add_u32 v5, {32 * 32768}, v5
            ''')
        a(f'''
        v_bfe_u32 v68, v0, 3, 5
        v_mul_u32_u24 v68, 144, v68
        v_and_b32 v69, 7, v1
        v_lshl_add_u32 v68, v69, 4, v68
        v_add_u32 v68, {L_H + 4608 * half}, v68
        ''')
        for s in range(14):
            a.wait(toks[s])
            for e in range(2):
                acc = vr(72 + 16 * e, 16)
                a(f'v_mfma_f32_32x32x16_bf16 {acc}, {vr(136 + 8 * s + 4 * e, 4)}, {vr(8 + 4 * s, 4)}, {"0" if s == 0 else acc}')
        a.wait(tr)
        a('ds_write_b128 v68, v[64:67]')

    def g2_partials(self, half):
        a = self.a
        if half:
            a('v_add_u32 v6, 0x10000, v6')
        for j in range(4):
            for h in range(2):
                t = 104 + 2 * j + h
                a(f'v_xor_b32 v{t}, {(4 * j + h) * 16}, v6')
        for j in range(4):
            for h in range(2):
                t = 104 + 2 * j + h
                a(f'ds_write2_b64 v{t}, {vr(72 + 4 * j + 2 * h, 2)}, {vr(88 + 4 * j + 2 * h, 2)} offset0:0 offset1:1')

    def g2_final(self, half):
        a = self.a
        if half:
            a('v_add_u32 v7, 0x10000, v7')
        toks = [a(f'ds_read_b128 {vr(104 + 4 * k, 4)}, v7 offset:{8192 * k}') for k in range(8)]
        a(f'''
        v_and_b32 v64, 15, v1
        v_lshrrev_b32 v65, 4, v0
        v_mul_u32_u24 v66, 288, v64
        v_lshl_add_u32 v66, v65, 2, v66
        v_add_u32 v66, {L_H + 4608 * half}, v66
        ds_read2_b32 v[68:69], v66 offset0:0 offset1:36
        v_lshlrev_b32 v66, 4, v64
        v_add_u32 v66, {L_GB}, v66
        ''')
        tg = a('ds_read_b128 v[72:75], v66')
        a(f'''
        s_lshl_b32 s{S_T}, s{S_RG2}, 15
        s_lshl_b32 s{S_T + 1}, s{S_DB}, 7
        s_add_u32 s{S_T}, s{S_T}, s{S_T + 1}
        s_add_u32 s{S_T}, s{S_T}, {half << 20}
        v_lshlrev_b32 v65, 10, v65
        v_lshl_add_u32 v65, v64, 3, v65
        v_add_u32 v65, s{S_T}, v65
        ''')
        for k in range(0, 8, 2):
            a.wait(toks[k + 1])
            for j in (0, 2):
                b = 104 + 4 * k + j
                a(f'v_pk_add_f32 {vr(b, 2)}, {vr(b, 2)}, {vr(b + 4, 2)}')
        for k, d in ((0, 8), (4, 8), (0, 16)):
            for j in (0, 2):
                b = 104 + 4 * k + j
                a(f'v_pk_add_f32 {vr(b, 2)}, {vr(b, 2)}, {vr(b + d, 2)}')
        a.wait(tg)
        a(f'''
        v_lshlrev_b32 v76, 16, v68
        v_and_b32 v77, 0xffff0000, v68
        v_lshlrev_b32 v78, 16, v69
        v_and_b32 v79, 0xffff0000, v69
        v_fmac_f32 v76, v72, v104
        v_fmac_f32 v77, v73, v106
        v_fmac_f32 v78, v74, v105
        v_fmac_f32 v79, v75, v107
        v_cvt_pk_bf16_f32 v76, v76, v77
        v_cvt_pk_bf16_f32 v77, v78, v79
        global_store_dwordx2 v65, v[76:77], {sp(S_OUT)}
        ''')

    def build(self):
        a = self.a
        g0 = f's_cmp_eq_u32 s{S_G}, 0'
        ts0 = f's_bitcmp0_b32 s{S_V}, 0'
        self.front()
        self.cond(f's_cmp_eq_u32 s{S_V}, 4', self.stats_final)
        a(f's_lshr_b32 s{S_T}, s2, 6\ns_lshl_b32 s{S_T + 1}, s{S_G}, 2\ns_add_u32 s{S_T}, s{S_T}, s{S_T + 1}')
        self.cond(f's_cmp_lt_u32 s{S_T}, 3', self.mod_job)
        self.chains()
        self.kprod()
        self.expand()
        st = {}

        def g0_a():
            t = self.s1_issue()
            self.afrags()
            self.hbuild(t)

        def g1_a():
            self.afrags()
            st['s1'] = self.s1_issue()
        self.cond(g0, g0_a, g1_a)
        self.barrier()
        self.stamp(6, 'B5')
        self.dump_regs('afrag', list(range(128, 256)))
        self.cond(ts0, lambda: self.conv_h0(0), lambda: self.conv_h0(1))
        self.barrier()
        self.stamp(7, 'B6')

        def g0_b():
            self.conv_epi()
            a(f'''
            v_lshrrev_b32 v12, 5, v0
            v_lshlrev_b32 v12, 11, v12
            v_and_b32 v31, 31, v1
            v_lshl_add_u32 v12, v31, 4, v12
            v_add_u32 v31, {WS_MODP + 32 * 2048}, v12
            v_add_u32 v12, {WS_MODP + 24 * 2048}, v12
            ''')

        def g1_b():
            a('s_waitcnt vmcnt(0)')
            self.hbuild(st['s1'])
        self.cond(g0, g0_b, g1_b)
        self.barrier()
        steps = self.wsteps
        n4 = (len(steps) + 3) // 4

        def hook(dl):
            def g0h():
                if dl == 1:
                    a('s_waitcnt vmcnt(0)')
                    self.flag2()
                    self.sv_issue()

            def g1h():
                self.wdma(steps[n4 * dl:n4 * (dl + 1)])
            return lambda: self.cond(g0, g0h, g1h)
        hooks = {dl: hook(dl) for dl in range(4)}
        self.cond(ts0, lambda: self.conv_h1(0, hooks), lambda: self.conv_h1(1, hooks))
        self.barrier()
        self.stamp(8, 'B7')

        def g0_c():
            self.f2_addr()
            t = self.f2_issue()
            a('s_waitcnt vmcnt(4)')
            from asmlib import Tok
            self.sv_build(Tok('vm', False))
            self.g1_addr()
            self.barrier()
            self.stamp(9, 'B8')
            self.poll(self.f2_issue, [60, 62, 64, 66], t)
            self.stamp(10, 'f2')
            a('s_setprio 2')
            self.g1_start()
            self.barrier()

        def g1_c():
            self.conv_epi()
            a('s_waitcnt vmcnt(0)')
            self.flag2()
            self.g1_addr()
            self.barrier()
            self.stamp(9, 'B8')
            self.cfrags()
            self.barrier()
            self.wd_load(8)
            self.f2_addr()
            t = self.f2_issue()
            self.poll(self.f2_issue, [60, 62, 64, 66], t)
            self.stamp(10, 'f2')
            a('s_setprio 1')
            self.g1_start()
        self.cond(g0, g0_c, g1_c)
        from asmlib import Tok
        a('s_waitcnt lgkmcnt(0)')
        self.xt = {}
        a.q['vm'] = []
        for ks in range(7):
            for j in range(4):
                t = Tok('vm', False); a.q['vm'].append(t); self.xt[ks] = t
        self.cond(f's_cmp_eq_u32 s{S_G}, s{S_ODD}', lambda: self.g1_main(4), lambda: self.g1_main(3))
        self.stamp(12, 'g1 end')
        self.g2_addr()

        def g0_d():
            a('s_setprio 0')
            a('s_waitcnt vmcnt(0)')
            self.flag3()
            self.cond(f's_cmp_eq_u32 s{S_V}, 0', self.gb_build)
            self.wd_load(8)
            self.f3_issue()
            a('s_waitcnt vmcnt(0)')

        def g1_d():
            self.f3_issue()
            a('s_waitcnt vmcnt(0)')
            self.flag3()
        self.cond(g0, g0_d, g1_d)
        self.g2_mma(0, Tok('vm', False))
        self.barrier()
        t = self.f3_issue()
        self.g2_partials(0)
        self.barrier()
        self.stamp(14, 'By')
        self.g2_final(0)
        self.g2_mma(1, t)
        self.g2_partials(1)
        self.barrier()
        self.stamp(16, 'Bz')
        self.g2_final(1)

        def epoch():
            a(f's_mov_b32 s{S_T}, 0')
            self.flag(S_T, 67, 68)
        a(f's_or_b32 s{S_T}, s2, s{S_V}')
        self.cond(f's_cmp_eq_u32 s{S_T}, 0', epoch)
        if self.stamps:
            self.stamp(17, 'end')
            a(f'''
            s_lshl_b32 s{S_T}, s2, 3
            s_add_u32 s{S_T}, s{S_T}, s{S_V}
            s_lshl_b32 s{S_T}, s{S_T}, 7
            s_add_u32 s{S_T}, s{S_T}, {WS_DBG}
            v_mov_b32 v2, s{S_T}
            s_waitcnt lgkmcnt(0)
            s_mov_b64 exec, 1
            ''')
            for k in range(18):
                a(f'v_mov_b32 v{8 + k}, s{S_STAMP + 2 * k}')
                a(f'global_store_dword v2, v{8 + k}, {sp(S_WS)} offset:{4 * k}')
        a('L_exit:\ns_endpgm')
        nops = a.fix_hazards()
        errs = a.check_waits()
        return nops, errs

    def source(self):
        ref = open(f'cdna_kernels/{NAME}.s.ref').read().split('\n')
        head = [l for l in ref if l.startswith(';') and 'offset' in l or l.startswith('; Kernarg')]
        k = NAME + '_kernel'
        return '\n'.join(head) + f'''
; @launch grid=(256,1,1) block=(512,1,1) lds={LDS_BYTES}
.amdgcn_target "amdgcn-amd-amdhsa--gfx950"
.text
.globl {k}
.p2align 8
.type {k},@function
{k}:
''' + self.a.text() + f'''.section .rodata,"a"
.p2align 6
.amdhsa_kernel {k}
  .amdhsa_next_free_vgpr 256
  .amdhsa_next_free_sgpr 102
  .amdhsa_accum_offset 256
  .amdhsa_group_segment_fixed_size 0
  .amdhsa_kernarg_size 144
  .amdhsa_user_sgpr_count 2
  .amdhsa_user_sgpr_kernarg_segment_ptr 1
  .amdhsa_system_sgpr_workgroup_id_x 1
  .amdhsa_float_denorm_mode_32 3
.end_amdhsa_kernel
'''


def make(path, **kw):
    g = Gen(**kw)
    nops, errs = g.build()
    open(path, 'w').write(g.source())
    return g, nops, errs


if __name__ == '__main__':
    out = sys.argv[1] if len(sys.argv) > 1 else f'cdna_kernels/{NAME}.s'
    g, nops, errs = make(out)
    print('instructions', len(g.a.ins), 'nops inserted', nops, 'barrier counts', g.a.barrier_counts)
    for e in errs:
        print('WAIT:', e)
```

```python
import re

REG = re.compile(r'^(-|abs\()?([vsa])(?:(\d+)|\[(\d+):(\d+)\])\)?$')
TRANS = ('v_exp_f32', 'v_log_f32', 'v_rcp_f32', 'v_rsq_f32', 'v_sqrt_f32', 'v_sin_f32', 'v_cos_f32')


def regs_of(tok):
    tok = tok.strip()
    if tok == 'vcc':
        return {'vcc'}
    if tok in ('exec', 'm0'):
        return {tok}
    if tok in ('vcc_lo', 'vcc_hi'):
        return {'vcc'}
    if tok in ('exec_lo', 'exec_hi'):
        return {'exec'}
    m = REG.match(tok)
    if not m:
        return set()
    k = m.group(2)
    if m.group(3) is not None:
        return {k + m.group(3)}
    return {k + str(i) for i in range(int(m.group(4)), int(m.group(5)) + 1)}


class Ins:
    def __init__(self, text):
        self.text = text
        self.label = None
        self.target = None
        t = text.split(';')[0].strip()
        if t.endswith(':'):
            self.label = t[:-1]
            self.op = None
            self.kind = 'label'
            self.defs = set(); self.uses = set()
            return
        parts = t.split(None, 1)
        self.op = op = parts[0]
        rest = parts[1] if len(parts) > 1 else ''
        ops = [o.strip() for o in re.split(r',(?![^\[]*\])', rest)] if rest else []
        self.mods = ''
        if ops:
            last = ops[-1].split(None, 1)
            ops[-1] = last[0]
            self.mods = last[1] if len(last) > 1 else ''
        self.ops = ops
        R = [regs_of(o) for o in ops]
        U = lambda idx: set().union(*[R[i] for i in idx]) if idx else set()
        n = len(ops)
        self.dpp = op.endswith('_dpp')
        self.srcA = self.srcB = self.srcC = set()
        self.store_data = set()
        if op.startswith('v_mfma'):
            self.kind = 'mfma'
            self.defs = R[0]; self.srcA, self.srcB, self.srcC = R[1], R[2], R[3]
            self.uses = R[1] | R[2] | R[3]
            self.passes = 8 if '32x32x16' in op else 4
        elif op.startswith('v_'):
            self.kind = 'valu'
            base = op.replace('_sdwa', '').replace('_dpp', '').replace('_e32', '').replace('_e64', '')
            self.base = base
            if base in ('v_permlane16_swap_b32', 'v_permlane32_swap_b32', 'v_swap_b32'):
                self.defs = R[0] | R[1]; self.uses = R[0] | R[1]
            elif base.startswith(('v_add_co', 'v_sub_co', 'v_addc_co', 'v_subb_co')):
                self.defs = R[0] | R[1]; self.uses = U(range(2, n))
            elif base == 'v_nop':
                self.defs = set(); self.uses = set()
            else:
                self.defs = set(R[0]); self.uses = U(range(1, n))
                if base.startswith(('v_fmac', 'v_dot2c', 'v_writelane')) or (self.dpp and 'bound_ctrl' not in self.mods):
                    self.uses |= R[0]
                if base.startswith('v_cmpx'):
                    self.defs |= {'exec'}
        elif op.startswith(('global_', 'buffer_')):
            self.kind = 'vmem'
            lds = 'load_lds' in op or re.search(r'\blds\b', self.mods)
            self.dma = bool(lds)
            if lds:
                self.defs = set(); self.uses = U(range(n)) | {'m0'}
            elif 'load' in op:
                self.defs = set(R[0]); self.uses = U(range(1, n))
            elif 'atomic' in op and 'sc0' in self.mods:
                self.defs = set(R[0]); self.uses = U(range(1, n))
            else:
                self.defs = set(); self.uses = U(range(n))
                if op.endswith(('x3', 'x4')):
                    self.store_data = R[1] if op.startswith('global_') else R[0]
        elif op.startswith('ds_'):
            self.kind = 'ds'
            if op.startswith(('ds_read', 'ds_bpermute', 'ds_permute', 'ds_swizzle')) or '_rtn' in op:
                self.defs = set(R[0]); self.uses = U(range(1, n))
            else:
                self.defs = set(); self.uses = U(range(n))
            if 'addtid' in op:
                self.uses |= {'m0'}
        elif op.startswith(('s_load', 's_memtime', 's_memrealtime')):
            self.kind = 'smem'
            self.defs = set(R[0]); self.uses = U(range(1, n))
        elif op.startswith('s_'):
            self.kind = 'salu'
            self.defs = set(); self.uses = set()
            if op.startswith(('s_branch', 's_cbranch')):
                self.target = ops[0]
            elif op.startswith(('s_cmp', 's_bitcmp')):
                self.uses = U(range(n))
            elif op in ('s_waitcnt', 's_barrier', 's_nop', 's_endpgm', 's_sleep', 's_setprio'):
                pass
            else:
                self.defs = set(R[0]); self.uses = U(range(1, n))
                if 'saveexec' in op:
                    self.defs |= {'exec'}
                if op.startswith(('s_addk', 's_mulk')):
                    self.uses |= R[0]
        else:
            raise ValueError('unknown instruction: ' + text)

    def states(self):
        if self.kind == 'label':
            return 0
        if self.op == 's_nop':
            return int(self.ops[0], 0) + 1
        return 1


def isv(s):
    return {r for r in s if r[0] in 'va' and r != 'vcc'}


def iss(s):
    return {r for r in s if r[0] == 's' or r == 'vcc'}


def need(p, c):
    n = 0
    if p.kind == 'valu':
        vd = isv(p.defs); sd = iss(p.defs)
        isdot = p.base.startswith('v_dot')
        if c.kind == 'mfma' and vd & c.uses:
            n = max(n, 3 if isdot else 2)
        if c.kind == 'mfma' and 'exec' in p.defs:
            n = max(n, 4)
        if c.kind == 'valu':
            if isdot and vd & (c.uses | c.defs):
                acc_only = c.base == p.base and not (vd & (regs_of(c.ops[1]) | regs_of(c.ops[2])))
                if not acc_only:
                    n = max(n, 3)
            if p.base in TRANS and vd & c.uses:
                n = max(n, 1)
            if c.dpp and vd & c.uses:
                n = max(n, 2)
            if c.base.startswith('v_permlane') and vd & c.uses:
                n = max(n, 2)
            if c.base in ('v_readlane_b32', 'v_readfirstlane_b32') and vd & c.uses:
                n = max(n, 1)
            if sd & c.uses:
                n = max(n, 4 if c.base in ('v_readlane_b32', 'v_writelane_b32') else 2)
            if 'exec' in p.defs:
                n = max(n, 5 if c.dpp else 4 if c.base.startswith(('v_readlane', 'v_readfirstlane', 'v_writelane', 'v_permlane')) else 0)
        if c.kind in ('vmem', 'ds') and isdot and vd & (c.uses | c.defs):
            n = max(n, 3)
        if c.kind == 'vmem' and sd & c.uses:
            n = max(n, 5)
        if c.kind in ('salu', 'smem') and sd & c.uses:
            n = max(n, 2)
    elif p.kind == 'mfma':
        big = p.passes == 8
        if c.kind == 'mfma':
            if p.defs & (c.srcA | c.srcB):
                n = max(n, 12 if big else 8)
            if p.defs & c.srcC and not (p.defs == c.srcC and p.passes == c.passes):
                n = max(n, 10 if big else 6)
            if p.defs & c.defs and not (p.defs == c.defs and p.passes == c.passes):
                n = max(n, 12 if big else 8)
        elif c.kind in ('valu', 'vmem', 'ds'):
            if p.defs & (c.uses | c.defs):
                n = max(n, 12 if big else 8)
            if c.kind == 'valu' and p.srcC & c.defs:
                n = max(n, 7 if big else 3)
    elif p.kind == 'salu':
        if 'm0' in p.defs and 'm0' in c.uses and c.kind in ('vmem', 'ds'):
            n = max(n, 1)
    elif p.kind == 'vmem':
        if p.store_data and p.store_data & c.defs:
            n = max(n, 2 if c.kind in ('valu', 'mfma') else 1)
    return n


class Tok:
    def __init__(self, cls, ctx, smem=False):
        self.cls = cls; self.ctx = dict(ctx); self.smem = smem; self.ret = []


def implied(c, cur):
    return all(cur.get(k) == v for k, v in c.items())


def excluded(c, cur):
    return any(k in cur and cur[k] != v for k, v in c.items())


class Asm:
    def __init__(self):
        self.ins = []
        self.q = {'vm': [], 'lgkm': []}
        self.ctx = {}
        self.uid = 0

    def _pending(self, t):
        return not excluded(t.ctx, self.ctx) and not any(implied(r, self.ctx) for r in t.ret)

    def _retire(self, cls, upto):
        for t in self.q[cls][:upto]:
            if self._pending(t):
                t.ret.append(dict(self.ctx))
        self.q[cls] = [t for t in self.q[cls] if not any(implied(r, t.ctx) for r in t.ret)]

    def __call__(self, text):
        tok = None
        lines = text if isinstance(text, list) else text.strip().split('\n')
        for line in lines:
            line = line.strip()
            if not line or line.startswith(';'):
                continue
            i = Ins(line)
            self.ins.append(i)
            if i.kind == 'vmem':
                tok = Tok('vm', self.ctx); self.q['vm'].append(tok)
            elif i.kind in ('ds', 'smem'):
                tok = Tok('lgkm', self.ctx, i.kind == 'smem'); self.q['lgkm'].append(tok)
            elif i.op == 's_waitcnt':
                for cls, name in (('vm', 'vmcnt'), ('lgkm', 'lgkmcnt')):
                    m = re.search(name + r'\((\d+)\)', line)
                    if m and int(m.group(1)) == 0:
                        self._retire(cls, len(self.q[cls]))
        return tok

    def label(self, base):
        self.uid += 1
        return f'L_{base}_{self.uid}'

    def wait(self, *toks):
        cnt = {}
        for t in toks:
            if t is None or t not in self.q[t.cls] or not self._pending(t):
                continue
            q = self.q[t.cls]
            k = q.index(t)
            cur = dict(self.ctx); cur.update(t.ctx)
            after = sum(1 for x in q[k + 1:] if implied(x.ctx, cur))
            if t.cls == 'lgkm' and any(x.smem and self._pending(x) for x in q):
                after = 0
            o = cnt.get(t.cls, (99, 0))
            cnt[t.cls] = min(o[0], after), max(o[1], k)
        if not cnt:
            return
        parts = []
        for cls, (after, k) in cnt.items():
            after = min(after, 63 if cls == 'vm' else 15)
            parts.append(f"{'vmcnt' if cls == 'vm' else 'lgkmcnt'}({after})")
        self.ins.append(Ins('s_waitcnt ' + ' '.join(parts)))
        for cls, (after, k) in cnt.items():
            if after == 0:
                self._retire(cls, len(self.q[cls]))
            else:
                for t in toks:
                    if t is not None and t.cls == cls and t in self.q[cls] and not excluded(t.ctx, self.ctx):
                        save = self.ctx
                        self.ctx = dict(save); self.ctx.update(t.ctx)
                        self._retire(cls, self.q[cls].index(t) + 1)
                        self.ctx = save

    def _cfg(self):
        lab = {i.label: k for k, i in enumerate(self.ins) if i.kind == 'label'}
        succ = [[] for _ in self.ins]
        for k, i in enumerate(self.ins):
            if i.op == 's_endpgm':
                continue
            if i.target is not None:
                succ[k].append(lab[i.target])
                if i.op == 's_branch':
                    continue
            if k + 1 < len(self.ins):
                succ[k].append(k + 1)
        pred = [[] for _ in self.ins]
        for k, s in enumerate(succ):
            for j in s:
                pred[j].append(k)
        return succ, pred

    def fix_hazards(self):
        total = 0
        again = True
        while again:
            again = False
            succ, pred = self._cfg()
            k = 0
            while k < len(self.ins):
                c = self.ins[k]
                pad = 0
                if c.kind != 'label':
                    stack = [(j, 0) for j in pred[k]]; seen = {}
                    while stack:
                        j, d = stack.pop()
                        if d >= 12 or seen.get(j, 99) <= d:
                            continue
                        seen[j] = d
                        p = self.ins[j]
                        if p.kind != 'label':
                            pad = max(pad, need(p, c) - d)
                        for jj in pred[j]:
                            stack.append((jj, d + p.states()))
                if pad > 0:
                    self.ins.insert(k, Ins(f's_nop {pad - 1}')); total += 1; again = True
                    succ, pred = self._cfg()
                    k += 1
                k += 1
        return total

    def check_waits(self):
        succ, _ = self._cfg()
        seen = set(); errs = set()
        stack = [(0, (), (), (), 0)]
        steps = 0
        self.barrier_counts = set()
        while stack:
            k, vm, lg, pr, nb = stack.pop()
            while True:
                steps += 1
                if steps > 20_000_000:
                    raise RuntimeError('check_waits: too many states')
                i = self.ins[k]
                if i.kind == 'label' or i.target is not None:
                    key = (k, vm, lg, pr, nb)
                    if key in seen:
                        break
                    seen.add(key)
                if i.kind != 'label':
                    touch = i.uses | i.defs
                    for q in (vm, lg):
                        for j in q:
                            p = self.ins[j]
                            if p.defs & touch:
                                same_q = (i.kind == 'vmem' and p.kind == 'vmem') or (i.kind == 'ds' and p.kind == 'ds')
                                if same_q and not (p.defs & i.uses):
                                    continue
                                errs.add((k, j))
                    if i.op == 's_waitcnt':
                        m = re.search(r'vmcnt\((\d+)\)', i.text)
                        if m:
                            n = int(m.group(1)); vm = vm[len(vm) - n:] if 0 < n < len(vm) else (() if n == 0 else vm)
                        m = re.search(r'lgkmcnt\((\d+)\)', i.text)
                        if m:
                            n = int(m.group(1))
                            if n == 0:
                                lg = ()
                            elif n < len(lg) and not any(self.ins[j].kind == 'smem' for j in lg):
                                lg = lg[len(lg) - n:]
                    elif i.kind == 'vmem':
                        vm = (vm + (k,))[-64:]
                    elif i.kind in ('ds', 'smem'):
                        lg = (lg + (k,))[-48:]
                    if i.op == 's_barrier':
                        nb += 1
                s = succ[k]
                if not s:
                    self.barrier_counts.add(nb)
                    break
                role = getattr(i, 'role', None)
                if role is not None:
                    name, fall = role
                    known = dict(pr)
                    if name in known:
                        k = s[1] if known[name] == fall else s[0]
                        continue
                    stack.append((s[1], vm, lg, tuple(sorted(pr + ((name, fall),))), nb))
                    pr = tuple(sorted(pr + ((name, not fall),)))
                    k = s[0]
                    continue
                for j in s[1:]:
                    stack.append((j, vm, lg, pr, nb))
                k = s[0]
        return [f'{self.ins[k].text}   <-- pending: {self.ins[j].text}' for k, j in sorted(errs)]

    def text(self):
        return '\n'.join((i.text if i.kind == 'label' else '    ' + i.text) for i in self.ins) + '\n'
```

```python
import struct
import sys
from asmlib import Asm

NAME = 'adaLN_cond__ssm_conv_s4__glu_gated_bilinear__prompt'

WS_ST1 = 0x10000
WS_MODP = 0x20000
WS_F2 = 0x40000
WS_F3 = 0x50000
WS_ST2 = 0x80000
WS_DBG = 0xC0000
WS_XT = 0x100000
WS_X1 = 0x500000
WS_X1S = 0x700000
WS_HH = 0x900000

RS = 544
L_W = 0
L_P = 0
L_Q = 42 * RS
L_CP = 0
L_H = 131072
L_PART = L_H + 9216
L_KT = L_PART
L_SV = L_PART + 16384
L_CF = L_SV + 2048
L_SILU = L_CF + 4096
L_SP = L_SILU + 256
L_GB = L_SP + 512
LDS_BYTES = 163840
assert L_GB + 256 == LDS_BYTES

S_X, S_ARE, S_AIM, S_BRE, S_BIM, S_CRE, S_CIM, S_LDT, S_DSK = 4, 6, 8, 10, 12, 14, 16, 18, 20
S_WG, S_WU, S_WD, S_C, S_WM, S_OUT, S_DBG, S_WS = 24, 26, 28, 30, 32, 34, 36, 38
S_V = 3
S_P, S_XCD, S_IDX, S_G = 40, 41, 42, 43
S_TAG = 44
S_LDTV, S_DSKV = 46, 47
S_T = 48
S_SPIN = 58
S_U = 59
S_MB1, S_NB1, S_ODD, S_RG1, S_RG2, S_DB = 60, 61, 62, 63, 22, 23
S_WL, S_MJ = 36, 37
S_JOB = 18
S_MOD = 6
S_STAMP = 64

G0 = f's_cmp_eq_u32 s{S_G}, 0'
G1 = f's_cmp_eq_u32 s{S_G}, 1'
TS0 = f's_bitcmp0_b32 s{S_V}, 0'
MODW = f's_cmp_lt_u32 s{S_MJ}, 3'
JOB = f's_cmp_eq_u32 s{S_JOB}, 0'
W7 = f's_cmp_eq_u32 s{S_V}, 7'
ROLES = {G0: ('g0', True), G1: ('g0', False), TS0: ('ts0', True), MODW: ('modw', True), JOB: ('job', True), W7: ('w7', True)}

LOG2E = 0x3fb8aa3b
ONES = 0x3f803f80
T0, T1, T2, T3, T4, T5 = (f's{S_T + k}' for k in range(6))


def sp(n):
    return f's[{n}:{n + 1}]'


def vr(n, k=1):
    return f'v{n}' if k == 1 else f'v[{n}:{n + k - 1}]'


def fhex(x):
    return hex(struct.unpack('<I', struct.pack('<f', x))[0])


def L(text):
    return [l.strip() for l in text.strip().split('\n') if l.strip()]


class Gen:
    def __init__(self, stamps=None, opt=None):
        self.a = Asm()
        self.stamps = stamps
        self.stamp_names = {}
        self.o = dict(warm=1, wsched=[1, 1, 2, 3, 0, 2, 2, 2, 2, 1], wd_early=1)
        if opt:
            self.o.update(opt)
        self.wsteps = list(range(15, -1, -1))
        self.twd = []

    def stamp(self, name):
        if self.stamps and name in self.stamps:
            k = self.stamps.index(name)
            self.stamp_names[k] = name
            self.a(f's_memrealtime {sp(S_STAMP + 2 * k)}')

    def barrier(self, name=None):
        self.a('s_waitcnt lgkmcnt(0)\ns_barrier')
        self.stamp(name)

    def poll(self, issue, tags, first):
        a = self.a
        a.wait(*(first if isinstance(first, list) else [first]))
        chk, done = a.label('chk'), a.label('ok')
        a(f's_mov_b32 s{S_SPIN}, 0')
        a(f'{chk}:')
        a(f'v_cmp_ne_u64 vcc, {sp(S_TAG)}, {vr(tags[0], 2)}')
        for k, t in enumerate(tags[1:]):
            s = S_T + 2 * (k % 4)
            a(f'v_cmp_ne_u64 {sp(s)}, {sp(S_TAG)}, {vr(t, 2)}')
            if k % 4 == 3 or k == len(tags) - 2:
                for j in range(k % 4 + 1):
                    a(f's_or_b64 vcc, vcc, {sp(S_T + 2 * j)}')
        if len(tags) > 1:
            a(f's_cbranch_scc0 {done}')
        else:
            a(f's_cbranch_vccz {done}')
        a.ctx[chk] = True
        a(f's_add_u32 s{S_SPIN}, s{S_SPIN}, 1')
        a(f's_cmp_gt_u32 s{S_SPIN}, 0x40000')
        a(f's_cbranch_scc1 {done}')
        a('s_sleep 1')
        issue()
        a('s_waitcnt vmcnt(0)')
        a(f's_branch {chk}')
        del a.ctx[chk]
        a(f'{done}:')

    def cond(self, cmp, then, other=None):
        a = self.a
        name, val = ROLES.get(cmp, (None, True))
        if name in a.ctx:
            (then if a.ctx[name] == val else (other or (lambda: None)))()
            return
        els, end = a.label('else'), a.label('end')
        a(cmp)
        a(f's_cbranch_scc0 {els}')
        a.ins[-1].role = ROLES.get(cmp)
        name = name or els
        a.ctx[name] = val
        then()
        if other:
            a(f's_branch {end}')
        a(f'{els}:')
        a.ctx[name] = not val
        if other:
            other()
            a(f'{end}:')
        del a.ctx[name]

    def cmul(self, d, z, w, t):
        self.a(f'v_pk_mul_f32 {vr(t, 2)}, {vr(z, 2)}, {vr(w, 2)} op_sel:[0,0] op_sel_hi:[0,1]')
        self.a(f'v_pk_fma_f32 {vr(d, 2)}, {vr(z, 2)}, {vr(w, 2)}, {vr(t, 2)} op_sel:[1,1,0] op_sel_hi:[1,0,1] neg_lo:[1,0,0]')

    def cexp(self, d, ar, ai, k, t):
        a = self.a
        if k == 1:
            a(f'v_exp_f32 v{t}, v{ar}\nv_fract_f32 v{t + 1}, v{ai}')
        else:
            a(f'v_mul_f32 v{t}, {fhex(k)}, v{ar}\nv_mul_f32 v{t + 1}, {fhex(k)}, v{ai}')
            a(f'v_exp_f32 v{t}, v{t}\nv_fract_f32 v{t + 1}, v{t + 1}')
        a(f'v_cos_f32 v{d}, v{t + 1}\nv_sin_f32 v{d + 1}, v{t + 1}')
        a(f'v_pk_mul_f32 {vr(d, 2)}, {vr(d, 2)}, {vr(t, 2)} op_sel:[0,0] op_sel_hi:[1,0]')

    def take_w(self, slot, low):
        n = self.o['wsched'][slot]
        steps = [s for s in self.wsteps[:n] if s >= low]
        self.wsteps = self.wsteps[len(steps):]
        return steps

    def wdma(self, steps):
        a = self.a

        def body():
            for s in steps:
                a(f's_add_u32 m0, s{S_WL}, {L_W + s * 8192}')
                a(f'v_subrev_u32 v2, 114688, v2')
                a(f'global_load_lds_dwordx4 v2, {sp(S_WG)}')
                a(f's_add_u32 m0, s{S_WL}, {L_W + s * 8192 + 1024}')
                a(f'v_subrev_u32 v3, 114688, v3')
                self.twd.append(a(f'global_load_lds_dwordx4 v3, {sp(S_WU)}'))
        if steps:
            self.cond(G1, body)

    def warm(self):
        a = self.a

        def body():
            a(f'''
            s_cmp_eq_u32 s{S_U}, 1
            s_cselect_b32 {T0}, s{S_WU}, s{S_WG}
            s_cselect_b32 {T1}, s{S_WU + 1}, s{S_WG + 1}
            s_cmp_eq_u32 s{S_U}, 2
            s_cselect_b32 {T0}, s{S_WD}, {T0}
            s_cselect_b32 {T1}, s{S_WD + 1}, {T1}
            s_mul_i32 {T2}, s2, 7168
            v_min_u32 v107, 55, v1
            s_mov_b32 m0, {L_GB}
            v_lshl_add_u32 v107, v107, 7, {T2}
            global_load_lds_dword v107, {sp(S_T)}
            ''')
        a(f's_sub_u32 {T0}, s{S_V}, 4')
        self.cond(f's_cmp_lt_u32 {T0}, 3', body)

    def front(self):
        a = self.a
        a('s_cmp_ge_u32 s2, 256\ns_cbranch_scc1 L_exit')
        a('s_load_dwordx16 s[4:19], s[0:1], 0\ns_load_dwordx16 s[20:35], s[0:1], 64\ns_load_dwordx2 s[38:39], s[0:1], 136')
        self.stamp('start')
        a(f'''
        v_lshrrev_b32 v2, 6, v0
        v_and_b32 v1, 63, v0
        v_readfirstlane_b32 s{S_V}, v2
        s_and_b32 s{S_XCD}, s2, 7
        s_lshr_b32 s{S_IDX}, s2, 3
        s_lshl_b32 s{S_P}, s{S_XCD}, 5
        s_add_u32 s{S_P}, s{S_P}, s{S_IDX}
        s_lshr_b32 s{S_G}, s{S_V}, 2
        s_and_b32 s{S_U}, s{S_V}, 3
        ''')
        a(f'''
        v_and_b32 v32, 1, v1
        v_bfe_u32 v33, v1, 1, 1
        v_lshl_or_b32 v31, v32, 1, v33
        v_and_b32 v33, 60, v1
        v_lshl_add_u32 v32, v31, 11, v33
        s_lshl_b32 {T0}, s2, 13
        s_lshl_b32 {T1}, s{S_V}, 7
        s_add_u32 {T0}, {T0}, {T1}
        v_add_u32 v32, {T0}, v32
        ''')
        a(f'''
        s_lshl_b32 {T0}, s{S_P}, 9
        s_lshl_b32 {T1}, s{S_U}, 7
        s_add_u32 {T0}, {T0}, {T1}
        v_lshl_add_u32 v33, v1, 1, {T0}
        ''')
        for r in range(100, 106):
            a(f'v_mov_b32 v{r}, 0')
        a(f'''
        s_and_b32 {T2}, s2, 3
        s_lshl_b32 {T3}, {T2}, 7
        s_lshl_b32 {T4}, s{S_V}, 4
        s_add_u32 {T3}, {T3}, {T4}
        v_lshrrev_b32 v34, 3, v1
        v_add_u32 v34, {T3}, v34
        v_mul_u32_u24 v34, 6144, v34
        v_and_b32 v35, 7, v1
        v_lshl_add_u32 v34, v35, 4, v34
        s_lshr_b32 {T3}, s2, 2
        s_lshl_b32 {T3}, {T3}, 7
        v_add_u32 v34, {T3}, v34
        v_add_u32 v35, {8 * 6144}, v34
        s_lshl_b32 {T2}, {T2}, 8
        v_lshl_add_u32 v36, v1, 2, {T2}
        s_lshl_b32 {T4}, s{S_V}, 11
        s_lshl_b32 {T5}, s{S_P}, 2
        s_waitcnt lgkmcnt(0)
        ''')
        self.stamp('karg')
        a(f'global_load_dword v4, v32, {sp(S_X)}')
        a(f'global_load_dword v5, v32, {sp(S_X)} offset:1024')
        a(f'global_load_dword v8, v32, {sp(S_X)} offset:64')
        tx = a(f'global_load_dword v9, v32, {sp(S_X)} offset:1088')
        a(f's_load_dwordx2 {sp(S_TAG)}, {sp(S_WS)}, 0')
        a(f's_load_dword s{S_LDTV}, {sp(S_LDT)}, {T5}')
        a(f's_load_dword s{S_DSKV}, {sp(S_DSK)}, {T5}')
        a(f'global_load_short_d16_hi v100, v33, {sp(S_ARE)}')
        self.tp = [a(f'global_load_short_d16_hi v101, v33, {sp(S_AIM)}')]

        def g1loads():
            for r, s in ((102, S_BRE), (103, S_BIM), (104, S_CRE), (105, S_CIM)):
                t = a(f'global_load_short_d16_hi v{r}, v33, {sp(s)}')
            self.tp.append(t)
        self.cond(G1, g1loads)
        self.tc = a(f'global_load_dword v106, v36, {sp(S_C)}')
        a(f'''
        s_cmp_lt_u32 s2, 192
        s_cselect_b32 {T0}, 0, 2048
        s_cselect_b64 exec, -1, 1
        v_subrev_u32 v34, {T0}, v34
        v_subrev_u32 v35, {T0}, v35
        s_add_u32 m0, {T4}, {L_KT}
        global_load_lds_dwordx4 v34, {sp(S_WM)}
        s_add_u32 m0, {T4}, {L_KT + 1024}
        ''')
        self.tw = a(f'global_load_lds_dwordx4 v35, {sp(S_WM)}')
        a('s_mov_b64 exec, -1')
        if self.o['warm'] == 1:
            self.warm()
        self.stamp('issued')
        a(f'''
        v_mov_b32 v40, 0
        v_mov_b32 v41, 0
        v_bfe_u32 v37, v0, 6, 1
        v_mul_u32_u24 v37, 4608, v37
        v_lshl_add_u32 v37, v1, 3, v37
        v_add_u32 v37, {L_H}, v37
        ds_write_b64 v37, v[40:41]
        ''')
        a(f'''
        v_and_b32 v37, 255, v0
        v_lshlrev_b32 v37, 3, v37
        v_sub_u32 v37, 2037, v37
        v_cvt_f32_i32 v37, v37
        s_mul_i32 {T0}, s{S_G}, 9216
        s_add_u32 {T0}, {T0}, {L_KT}
        v_mov_b32 v44, {L_H}
        s_movk_i32 {T1}, 0xf8
        ''')
        for k in range(0, 11, 2):
            a('v_add_f32 v38, 1.0, v37')
            a('v_cvt_pk_bf16_f32 v40, v37, v38')
            a('v_add_f32 v37, 2.0, v37')
            for h in range(2):
                if k + h > 10:
                    continue
                a('v_lshlrev_b32 v41, 16, v40' if h == 0 else 'v_and_b32 v41, 0xffff0000, v40')
                if k + h < 3:
                    a('v_cmp_gt_f32 vcc, 0, v41')
                a(f'''
                v_cvt_u32_f32 v41, v41
                v_lshrrev_b32 v42, 5, v41
                v_bfi_b32 v42, {T1}, v42, v41
                v_bfe_u32 v43, v41, 3, 5
                v_and_b32 v42, 0xff, v42
                v_lshl_add_u32 v43, v43, 2, {T0}
                v_lshl_add_u32 v{108 + k + h}, v42, 7, v43
                ''')
                if k + h < 3:
                    a(f'v_cndmask_b32 v{108 + k + h}, v{108 + k + h}, v44, vcc')
        a(f'''
        s_lshl_b32 {T0}, s2, 14
        s_add_u32 {T0}, {T0}, {T4}
        s_add_u32 {T0}, {T0}, {WS_XT}
        v_lshl_add_u32 v98, v1, 4, {T0}
        v_and_b32 v33, 3, v1
        v_lshrrev_b32 v34, 4, v1
        v_lshlrev_b32 v33, 4, v33
        v_lshl_add_u32 v33, v34, 2, v33
        s_lshl_b32 {T0}, s{S_V}, 6
        s_add_u32 {T0}, {T0}, {L_SP}
        v_add_u32 v97, {T0}, v33
        s_waitcnt lgkmcnt(0)
        s_add_u32 s{S_TAG}, s{S_TAG}, 1
        s_addc_u32 s{S_TAG + 1}, s{S_TAG + 1}, 0
        s_lshl_b32 {T0}, s{S_LDTV}, 16
        s_and_b32 {T1}, s{S_LDTV}, 0xffff0000
        s_cmp_ge_u32 s{S_U}, 2
        s_cselect_b32 {T0}, {T1}, {T0}
        v_mov_b32 v32, {LOG2E}
        v_mul_f32 v32, {T0}, v32
        v_exp_f32 v32, v32
        s_mov_b32 {T0}, {ONES}
        v_mov_b32 v6, s{S_TAG}
        v_mov_b32 v7, s{S_TAG + 1}
        v_mov_b32 v10, s{S_TAG}
        v_mov_b32 v11, s{S_TAG + 1}
        v_cvt_pk_bf16_f32 v32, v32, v32
        v_and_b32 v32, 0xffff0000, v32
        ''')
        self.stamp('pre')
        self.cond(G0, lambda: a.wait(tx), lambda: a.wait(tx))
        self.stamp('xarr')
        a(f'global_store_dwordx4 v98, v[4:7], {sp(S_WS)} sc1')
        a(f'global_store_dwordx4 v98, v[8:11], {sp(S_WS)} offset:1024 sc1')
        a(f'''
        v_dot2_f32_bf16 v36, v4, {T0}, 0
        v_dot2_f32_bf16 v37, v5, {T0}, 0
        v_dot2_f32_bf16 v38, v4, v4, 0
        v_dot2_f32_bf16 v39, v5, v5, 0
        v_dot2_f32_bf16 v36, v8, {T0}, v36
        v_dot2_f32_bf16 v37, v9, {T0}, v37
        v_dot2_f32_bf16 v38, v8, v8, v38
        v_dot2_f32_bf16 v39, v9, v9, v39
        s_lshr_b32 {T0}, s{S_U}, 1
        s_and_b32 {T1}, s{S_U}, 1
        s_lshl_b32 {T1}, {T1}, 8
        v_permlane32_swap_b32 v36, v38
        v_permlane32_swap_b32 v37, v39
        v_add_f32 v36, v36, v38
        v_add_f32 v37, v37, v39
        v_permlane16_swap_b32 v36, v37
        v_add_f32 v36, v36, v37
        v_add_f32_dpp v36, v36, v36 row_ror:4 row_mask:0xf bank_mask:0xf
        v_add_f32_dpp v36, v36, v36 row_ror:8 row_mask:0xf bank_mask:0xf
        ds_write_b32 v97, v36
        ''')
        self.stamp('part')

    def chains(self):
        a = self.a

        def scale():
            a.wait(*self.tp)
            a(f'''
            v_mul_f32 v33, v32, v100
            v_mul_f32 v34, v32, v101
            v_mul_f32 v33, {LOG2E}, v33
            v_mul_f32 v34, 0.15915494, v34
            ''')

        def qchain():
            a(f's_mul_i32 {T0}, {T0}, {32 * RS}\ns_add_u32 {T0}, {T0}, {T1}\ns_add_u32 m0, {T0}, {L_Q}')
            scale()
            self.cexp(36, 33, 34, 8.0, 38)
            a('v_mov_b32 v44, 0x3f80\nds_write_addtid_b32 v44 offset:0')
            z = 36
            for b in range(1, 32):
                c = 44 + (b & 1)
                a(f'v_cvt_pk_bf16_f32 v{c}, v{z}, v{z + 1}')
                if b < 31:
                    n = 40 + 2 * (b & 1)
                    self.cmul(n, z, 36, 38)
                    z = n
                a(f'ds_write_addtid_b32 v{c} offset:{RS * b}')

        def pchain():
            a(f's_mul_i32 {T0}, {T0}, {21 * RS}\ns_add_u32 {T0}, {T0}, {T1}\ns_add_u32 m0, {T0}, {L_P}')
            scale()
            a('v_mul_f32 v102, v32, v102\nv_mul_f32 v103, v32, v103')
            self.cmul(48, 104, 102, 38)
            self.cexp(36, 33, 34, 1, 38)
            self.cexp(40, 33, 34, 256.0, 38)
            cnt = [0]

            def put(row, z):
                c = 44 + (cnt[0] & 1); cnt[0] += 1
                a(f'v_cvt_pk_bf16_f32 v{c}, v{z}, -v{z + 1}')
                a(f'ds_write_addtid_b32 v{c} offset:{RS * row}')
            put(0, 48)
            for r in range(1, 8):
                self.cmul(48 + 2 * r, 46 + 2 * r, 36, 38)
                put(r, 48 + 2 * r)
            for k in range(4):
                self.cmul(50 + 4 * k, 48 + 4 * k, 40, 38)
                put(8 + k, 50 + 4 * k)
            self.cmul(48, 50, 40, 38); put(12, 48)
            self.cmul(56, 58, 40, 38); put(13, 56)
            self.cmul(50, 48, 40, 38); put(14, 50)
            self.cmul(58, 56, 40, 38); put(15, 58)
            z = 50
            for r in range(16, 21):
                n = 48 if z == 50 else 50
                self.cmul(n, z, 40, 38); put(r, n)
                z = n

            def silu():
                a.wait(self.tc)
                a(f'''
                v_lshlrev_b32 v36, 16, v106
                v_and_b32 v37, 0xffff0000, v106
                v_mul_f32 v38, {hex(LOG2E | 0x80000000)}, v36
                v_mul_f32 v39, {hex(LOG2E | 0x80000000)}, v37
                v_exp_f32 v38, v38
                v_exp_f32 v39, v39
                s_mov_b32 m0, {L_SILU}
                v_add_f32 v38, 1.0, v38
                v_add_f32 v39, 1.0, v39
                v_rcp_f32 v38, v38
                v_rcp_f32 v39, v39
                v_mul_f32 v36, v36, v38
                v_mul_f32 v37, v37, v39
                v_cvt_pk_bf16_f32 v36, v36, v37
                ds_write_addtid_b32 v36 offset:0
                ''')
            self.cond(W7, silu)
        self.cond(G0, qchain, pchain)
        self.stamp('chain')
        if self.o['warm'] == 2:
            self.warm()
        a(f'''
        v_and_b32 v36, 15, v1
        v_lshrrev_b32 v37, 4, v1
        v_mul_u32_u24 v38, {RS}, v36
        v_lshl_add_u32 v38, v37, 4, v38
        s_lshr_b32 {T0}, s{S_U}, 1
        s_and_b32 {T1}, s{S_U}, 1
        s_mul_i32 {T2}, s{S_G}, {21 * RS}
        s_mul_i32 {T3}, {T0}, {16 * RS}
        s_add_u32 {T2}, {T2}, {T3}
        v_add_u32 v120, {T2}, v38
        s_mul_i32 {T2}, s{S_G}, {32 * RS}
        s_mul_i32 {T3}, {T1}, {16 * RS}
        s_add_u32 {T2}, {T2}, {T3}
        s_add_u32 {T2}, {T2}, {L_Q}
        v_add_u32 v121, {T2}, v38
        v_bfe_u32 v38, v1, 2, 2
        v_lshl_add_u32 v38, v37, 3, v38
        v_lshlrev_b32 v38, 7, v38
        v_and_b32 v39, 3, v1
        v_lshl_add_u32 v38, v39, 3, v38
        s_lshl_b32 {T2}, s{S_V}, 5
        s_add_u32 {T2}, {T2}, {L_KT}
        v_add_u32 v90, {T2}, v38
        v_lshlrev_b32 v91, 4, v37
        v_add_u32 v91, {L_SILU}, v91
        s_lshr_b32 s{S_MJ}, s2, 6
        s_lshl_b32 {T2}, s{S_G}, 2
        s_add_u32 s{S_MJ}, s{S_MJ}, {T2}
        ''')
        a.wait(self.tw)
        self.stamp('preB2')
        self.barrier('B2')

    def meanstd(self, m, e2, n, t):
        a = self.a
        for k in range(n):
            a(f'v_fma_f32 v{e2 + k}, -v{m + k}, v{m + k}, v{e2 + k}')
        for k in range(n):
            a(f'v_max_f32 v{e2 + k}, 0, v{e2 + k}')
        o = e2 + (1 if n == 2 else 0)
        for add in (True, False):
            a(f'v_cvt_pk_bf16_f32 v{t}, v{e2}, v{o}')
            a(f'v_lshlrev_b32 v{e2}, 16, v{t}')
            if n == 2:
                a(f'v_and_b32 v{o}, 0xffff0000, v{t}')
            for k in range(n):
                a(f'v_add_f32 v{e2 + k}, {fhex(1e-5)}, v{e2 + k}' if add else f'v_sqrt_f32 v{e2 + k}, v{e2 + k}')

    def stats_final(self):
        a = self.a
        a(f'''
        v_lshlrev_b32 v38, 4, v36
        v_add_u32 v38, {L_SP}, v38
        ds_read_b128 v[48:51], v38
        ds_read_b128 v[52:55], v38 offset:256
        s_lshl_b32 {T2}, s2, 6
        s_add_u32 {T2}, {T2}, {WS_ST1}
        v_lshl_add_u32 v39, v31, 4, {T2}
        s_mov_b32 {T2}, {fhex(1 / 512)}
        s_waitcnt lgkmcnt(0)
        ''')
        for r in range(48, 52):
            a(f'v_add_f32 v{r}, v{r}, v{r + 4}')
        for sh in (4, 8):
            for r in range(48, 52):
                a(f'v_add_f32_dpp v{r}, v{r}, v{r} row_ror:{sh} row_mask:0xf bank_mask:0xf')
        for r in range(48, 52):
            a(f'v_mul_f32 v{r}, {T2}, v{r}')
        self.meanstd(48, 50, 2, 52)
        a(f'''
        v_cvt_pk_bf16_f32 v4, v48, v50
        v_cvt_pk_bf16_f32 v5, v49, v51
        s_mov_b64 exec, 15
        global_store_dwordx4 v39, v[4:7], {sp(S_WS)} sc1
        s_mov_b64 exec, -1
        ''')

    def mod_job(self):
        a = self.a
        toks = []
        for ks in range(4):
            a(f'ds_read_b128 {vr(192 + 8 * ks, 4)}, v91 offset:{64 * ks}')
            a(f'ds_read_b64_tr_b16 {vr(196 + 8 * ks, 2)}, v90 offset:{4096 * ks}')
            toks.append(a(f'ds_read_b64_tr_b16 {vr(198 + 8 * ks, 2)}, v90 offset:{4096 * ks + 512}'))
        a(f'''
        v_lshlrev_b32 v92, 3, v1
        v_add_u32 v93, 4, v92
        ''')
        for ks in range(4):
            a.wait(toks[ks])
            a(f'v_mfma_f32_16x16x32_bf16 v[44:47], {vr(192 + 8 * ks, 4)}, {vr(196 + 8 * ks, 4)}, {"0" if ks == 0 else "v[44:47]"}')
        a('ds_bpermute_b32 v4, v92, v44')
        self.tb = a('ds_bpermute_b32 v5, v93, v44')

    def mod_store(self):
        a = self.a
        a(f'''
        s_lshl_b32 {T2}, s2, 9
        s_lshl_b32 {T3}, s{S_V}, 7
        s_add_u32 {T2}, {T2}, {T3}
        s_add_u32 {T2}, {T2}, {WS_MODP}
        v_lshl_add_u32 v94, v1, 4, {T2}
        ''')
        a.wait(self.tb)
        a(f'''
        s_mov_b64 exec, 255
        global_store_dwordx4 v94, v[4:7], {sp(S_WS)} sc1
        s_mov_b64 exec, -1
        ''')

    def kprod(self):
        a = self.a
        self.cond(f's_cmp_eq_u32 s{S_V}, 4', self.stats_final)
        self.cond(MODW, self.mod_job)
        toks = []
        for ks in range(8):
            a(f'ds_read_b128 {vr(128 + 8 * ks, 4)}, v120 offset:{64 * ks}')
            toks.append(a(f'ds_read_b128 {vr(132 + 8 * ks, 4)}, v121 offset:{64 * ks}'))
            if ks == 2:
                self.cond(MODW, self.mod_store)
        self.stamp('jobs')
        a(f'''
        s_cmp_eq_u32 {T0}, 0
        s_mov_b32 {T2}, 0x41414020
        s_cselect_b32 {T2}, 0x10080400, {T2}
        s_mov_b32 {T3}, 0x01010108
        s_cselect_b32 {T3}, 0x04020101, {T3}
        v_lshlrev_b32 v37, 3, v37
        v_bfe_u32 v38, {T2}, v37, 8
        v_bfe_u32 v39, {T3}, v37, 8
        s_mul_i32 {T2}, s{S_G}, 9216
        s_lshl_b32 {T1}, {T1}, 6
        s_add_u32 {T2}, {T2}, {T1}
        s_add_u32 {T2}, {T2}, {L_KT}
        v_lshl_add_u32 v36, v36, 2, {T2}
        v_lshl_add_u32 v122, v38, 7, v36
        v_lshl_add_u32 v123, v39, 7, v122
        v_lshl_add_u32 v124, v39, 7, v123
        v_lshl_add_u32 v125, v39, 7, v124
        s_and_b32 s{S_MB1}, s{S_XCD}, 1
        s_lshl_b32 s{S_MB1}, s{S_MB1}, 2
        s_and_b32 {T0}, s{S_IDX}, 3
        s_add_u32 s{S_MB1}, s{S_MB1}, {T0}
        s_lshr_b32 s{S_NB1}, s{S_XCD}, 1
        s_lshl_b32 s{S_NB1}, s{S_NB1}, 3
        s_lshr_b32 s{S_DB}, s{S_IDX}, 2
        s_add_u32 s{S_NB1}, s{S_NB1}, s{S_DB}
        s_and_b32 s{S_ODD}, s{S_NB1}, 1
        s_lshl_b32 s{S_RG2}, s{S_XCD}, 2
        s_add_u32 s{S_RG2}, s{S_RG2}, {T0}
        s_lshl_b32 s{S_RG1}, s{S_G}, 5
        s_lshl_b32 {T0}, s{S_MB1}, 2
        s_add_u32 s{S_RG1}, s{S_RG1}, {T0}
        s_add_u32 s{S_RG1}, s{S_RG1}, s{S_U}
        s_and_b32 s{S_JOB}, s{S_NB1}, 3
        s_xor_b32 s{S_JOB}, s{S_JOB}, s{S_U}
        s_lshl_b32 s{S_WL}, s{S_U}, 11
        ''')

        def wsrc():
            a(f'''
            v_bfe_u32 v37, v1, 1, 2
            v_bfe_u32 v38, v1, 4, 1
            v_xor_b32 v37, v37, v38
            s_and_b32 {T0}, s{S_U}, 1
            s_lshl_b32 {T0}, {T0}, 1
            v_xor_b32 v37, {T0}, v37
            v_xor_b32 v38, 2, v37
            v_add_u32 v37, s{S_ODD}, v37
            v_add_u32 v38, s{S_ODD}, v38
            v_and_b32 v37, 3, v37
            v_and_b32 v38, 3, v38
            v_bfe_u32 v39, v0, 3, 5
            v_mul_u32_u24 v39, 3584, v39
            v_and_b32 v48, 1, v1
            v_lshl_add_u32 v39, v48, 4, v39
            s_mul_i32 {T0}, s{S_NB1}, 112
            s_lshl_b32 {T1}, s{S_ODD}, 4
            s_sub_u32 {T0}, {T0}, {T1}
            s_add_u32 {T0}, {T0}, {16 * 114688}
            v_add_u32 v39, {T0}, v39
            v_lshl_add_u32 v2, v37, 5, v39
            v_lshl_add_u32 v3, v38, 5, v39
            ''')
            self.wdma(self.take_w(0, 8))
        self.cond(G1, wsrc)
        for ks in range(8):
            a.wait(toks[ks])
            a(f'v_mfma_f32_16x16x32_bf16 v[40:43], {vr(128 + 8 * ks, 4)}, {vr(132 + 8 * ks, 4)}, {"0" if ks == 0 else "v[40:43]"}')
        a(f'''
        v_and_b32 v36, 255, v0
        s_mul_i32 {T0}, s{S_G}, 16640
        v_lshl_add_u32 v126, v36, 4, {T0}
        v_bfe_u32 v36, v1, 1, 3
        v_mul_u32_u24 v36, 4160, v36
        v_and_b32 v37, 1, v1
        v_lshl_add_u32 v127, v37, 4, v36
        ''')
        a('s_barrier')
        for i in range(4):
            a(f'ds_write_b32 v{122 + i}, v{40 + i}')
        self.wdma(self.take_w(1, 5))
        self.barrier('B3')

    def s1_issue(self):
        a = self.a
        a(f'global_load_dwordx4 v[48:51], v15, {sp(S_WS)} sc1')
        a(f'global_load_dwordx4 v[40:43], v14, {sp(S_WS)} sc1')
        a(f'global_load_dwordx4 v[44:47], v14, {sp(S_WS)} offset:16 sc1')
        a(f'global_load_dwordx4 v[32:35], v12, {sp(S_WS)} sc1')
        return a(f'global_load_dwordx4 v[36:39], v13, {sp(S_WS)} sc1')

    def expand(self):
        a = self.a
        for k in range(11):
            t = a(f'ds_read_b32 v{64 + k}, v{108 + k}')
        a(f'''
        v_lshrrev_b32 v36, 2, v0
        v_lshlrev_b32 v36, 15, v36
        v_and_b32 v37, 3, v1
        v_lshl_add_u32 v36, v37, 4, v36
        s_lshl_b32 {T0}, s{S_P}, 6
        s_add_u32 {T0}, {T0}, {WS_XT}
        v_add_u32 v12, {T0}, v36
        v_add_u32 v13, 16384, v12
        v_lshlrev_b32 v14, 5, v0
        v_add_u32 v14, {WS_ST1}, v14
        v_bfe_u32 v38, v1, 2, 2
        v_cmp_eq_u32 vcc, 3, v38
        v_mov_b32 v76, 0
        v_mov_b32 v77, 0
        v_addc_co_u32 v36, vcc, 0, v38, vcc
        v_mov_b32 v78, 0
        v_mov_b32 v79, 0
        ''')
        a(f'ds_write_b128 v127, v[76:79] offset:{L_CP + 4096}')
        a.wait(t)
        fill = L(f'''
        v_lshlrev_b32 v36, 14, v36
        v_lshl_add_u32 v36, v37, 9, v36
        s_lshl_b32 {T0}, s{S_XCD}, 11
        s_lshl_b32 {T1}, s{S_IDX}, 4
        s_add_u32 {T0}, {T0}, {T1}
        s_add_u32 {T0}, {T0}, {WS_MODP}
        v_add_u32 v15, {T0}, v36
        v_mul_u32_u24 v36, 4160, v37
        v_lshrrev_b32 v37, 4, v1
        v_lshl_add_u32 v36, v37, 4, v36
        v_lshlrev_b32 v38, 3, v38
        v_sub_u32 v36, v36, v38
        s_lshr_b32 {T0}, s{S_U}, 1
        s_lshl_b32 {T1}, {T0}, 8
        s_mul_i32 {T2}, s{S_G}, 16640
        s_sub_u32 {T2}, {T2}, {T1}
        s_add_u32 {T2}, {T2}, {L_CP + 280}
        v_add_u32 v24, {T2}, v36
        ''')
        for c in range(4):
            for k in range(4):
                lo = c - 2 * k + 7
                a(f'v_cvt_pk_bf16_f32 v{80 + 4 * c + k}, v{64 + lo}, v{64 + lo - 1}')
            a(f'ds_write_b128 v126, {vr(80 + 4 * c, 4)} offset:{L_CP + 4160 * c}')
        a(fill)
        self.wdma(self.take_w(2, 5))
        self.barrier('B4')

    def afrags(self, steps):
        a = self.a
        fill = L(f'''
        v_lshrrev_b32 v57, 4, v1
        v_and_b32 v56, 15, v1
        v_lshlrev_b32 v58, 5, v56
        v_lshl_add_u32 v58, v57, 4, v58
        s_lshr_b32 {T0}, s{S_U}, 1
        s_lshl_b32 {T1}, {T0}, 8
        s_mul_i32 {T2}, s{S_G}, 4608
        s_sub_u32 {T2}, {T2}, {T1}
        s_add_u32 {T2}, {T2}, {L_H + 288}
        v_add_u32 v25, {T2}, v58
        v_lshl_add_u32 v56, v57, 2, v56
        v_and_b32 v56, 15, v56
        v_lshl_add_u32 v56, v57, 4, v56
        s_lshr_b32 {T2}, s{S_V}, 1
        s_lshl_b32 {T2}, {T2}, 12
        s_add_u32 {T2}, {T2}, {L_PART}
        v_lshl_add_u32 v26, v56, 4, {T2}
        v_lshrrev_b32 v56, 2, v1
        v_and_b32 v57, 3, v1
        v_lshl_add_u32 v56, v57, 2, v56
        v_and_b32 v56, 15, v56
        v_lshl_add_u32 v56, v57, 4, v56
        s_lshl_b32 {T2}, s{S_U}, 10
        s_add_u32 {T2}, {T2}, {L_PART}
        v_lshl_add_u32 v27, v56, 4, {T2}
        v_lshlrev_b32 v28, 3, v0
        v_add_u32 v28, {L_H + 512}, v28
        v_lshrrev_b32 v56, 3, v0
        v_lshlrev_b32 v56, 15, v56
        v_and_b32 v57, 7, v1
        v_lshl_add_u32 v56, v57, 4, v56
        s_lshl_b32 {T2}, s{S_P}, 7
        s_add_u32 {T2}, {T2}, {WS_X1}
        v_add_u32 v29, {T2}, v56
        v_add_u32 v30, {WS_X1S - WS_X1}, v29
        ''')
        steps = list(steps)
        gap = 8 // max(len(steps), 1)
        for m in range(8):
            for dl in range(4):
                r = 128 + (dl * 8 + m) * 4
                off = 2 * (1888 - 256 * m - 32 * dl)
                a(f'ds_read_b64 {vr(r, 2)}, v24 offset:{off}')
                a(f'ds_read_b64 {vr(r + 2, 2)}, v24 offset:{off + 8}')
                a(fill[:2]); fill = fill[2:]
            if steps and m % gap == gap - 1:
                self.wdma([steps.pop(0)])
        a(fill)
        self.wdma(steps)

    def hbuild(self, tok):
        a = self.a
        self.stamp('preS1')
        self.poll(self.s1_issue, [34, 38, 42, 46, 50], tok)
        self.stamp('S1')
        st = (40, 41, 44, 45)
        a(f'''
        v_add_f32_dpp v48, v48, v48 quad_perm:[1,0,3,2] row_mask:0xf bank_mask:0xf
        v_add_f32_dpp v49, v49, v49 quad_perm:[1,0,3,2] row_mask:0xf bank_mask:0xf
        s_mov_b32 vcc_lo, 0x33333333
        s_mov_b32 vcc_hi, 0x33333333
        v_add_f32_dpp v48, v48, v48 quad_perm:[2,3,0,1] row_mask:0xf bank_mask:0xf
        v_add_f32_dpp v49, v49, v49 quad_perm:[2,3,0,1] row_mask:0xf bank_mask:0xf
        v_bfe_u32 v51, v1, 2, 1
        v_cvt_pk_bf16_f32 v50, v48, v49
        v_cvt_f32_u32 v51, v51
        v_lshlrev_b32 v48, 16, v50
        v_and_b32 v49, 0xffff0000, v50
        v_add_f32 v48, v48, v51
        v_add_f32 v49, v49, v51
        v_cvt_pk_bf16_f32 v50, v48, v49
        v_cndmask_b32_dpp v4, v36, v32, vcc quad_perm:[2,3,0,1] row_mask:0xf bank_mask:0xf bound_ctrl:0
        v_cndmask_b32_dpp v5, v37, v33, vcc quad_perm:[2,3,0,1] row_mask:0xf bank_mask:0xf bound_ctrl:0
        s_not_b64 vcc, vcc
        v_cndmask_b32_dpp v6, v32, v36, vcc quad_perm:[2,3,0,1] row_mask:0xf bank_mask:0xf bound_ctrl:0
        v_cndmask_b32_dpp v7, v33, v37, vcc quad_perm:[2,3,0,1] row_mask:0xf bank_mask:0xf bound_ctrl:0
        ''')
        for k in range(2):
            a(f'v_readlane_b32 s{S_MOD + 2 * k + 1}, v50, {4 * k}')
        for i in range(4):
            a(f'v_and_b32 v{53 + 2 * i}, 0xffff0000, v{st[i]}')
            a(f'v_lshlrev_b32 v{52 + 2 * i}, 16, v{st[i]}')
            a(f'v_rcp_f32 v{53 + 2 * i}, v{53 + 2 * i}')
        for k in range(2):
            a(f's_lshl_b32 s{S_MOD + 2 * k}, s{S_MOD + 2 * k + 1}, 16')
            a(f's_and_b32 s{S_MOD + 2 * k + 1}, s{S_MOD + 2 * k + 1}, 0xffff0000')
        a(f'v_mov_b32 v48, s{S_MOD}\nv_mov_b32 v49, s{S_MOD + 1}')
        for i in range(4):
            x = 32 + 2 * i
            a(f'v_lshlrev_b32 v{x}, 16, v{4 + i}\nv_and_b32 v{x + 1}, 0xffff0000, v{4 + i}')
        for i in range(4):
            x = 32 + 2 * i
            a(f'v_pk_add_f32 {vr(x, 2)}, {vr(x, 2)}, {vr(52 + 2 * i, 2)} op_sel:[0,0] op_sel_hi:[1,0] neg_lo:[0,1] neg_hi:[0,1]')
        for i in range(4):
            x = 32 + 2 * i
            a(f'v_pk_mul_f32 {vr(x, 2)}, {vr(x, 2)}, {vr(52 + 2 * i, 2)} op_sel:[0,1] op_sel_hi:[1,1]')
        for i in range(4):
            x = 32 + 2 * i
            a(f'v_pk_fma_f32 {vr(x, 2)}, {vr(x, 2)}, {sp(S_MOD + 2)}, v[48:49]')
        for ch in range(2):
            a(f'v_cvt_pk_bf16_f32 v{8 + 2 * ch}, v{32 + ch}, v{34 + ch}')
            a(f'v_cvt_pk_bf16_f32 v{9 + 2 * ch}, v{36 + ch}, v{38 + ch}')
            a(f'ds_write_b64 v28, {vr(8 + 2 * ch, 2)} offset:{4608 * ch}')
        for k in range(2, 4):
            a(f'v_readlane_b32 s{S_MOD + 2 * k + 1}, v50, {4 * k}')
        a(f's_mov_b32 s{S_MOD + 9}, s{S_DSKV}')
        for k in (4, 2, 3):
            a(f's_lshl_b32 s{S_MOD + 2 * k}, s{S_MOD + 2 * k + 1}, 16')
            a(f's_and_b32 s{S_MOD + 2 * k + 1}, s{S_MOD + 2 * k + 1}, 0xffff0000')

    def conv_h0(self, ts, steps):
        a = self.a
        lo, hi = ts, 3 - ts
        toks = {}
        for dl in range(4):
            for mp in range(hi + 1):
                toks[dl, mp] = a(f'ds_read_b128 {vr(64 + (dl * 4 + mp) * 4, 4)}, v25 offset:{192 - 64 * dl + 512 * mp}')
        for dl in range(4):
            for mp in range(hi + 1, 4):
                a(f'ds_read_b128 {vr(64 + (dl * 4 + mp) * 4, 4)}, v25 offset:{192 - 64 * dl + 512 * mp}')
        first = {lo: True, hi: True}
        for dl in range(4):
            for mp in range(4):
                for jt, acc in ((lo, 16), (hi, 20)):
                    m = jt - mp
                    if m < 0:
                        continue
                    a.wait(toks[dl, mp])
                    c = '0' if first[jt] else vr(acc, 4)
                    first[jt] = False
                    a(f'v_mfma_f32_16x16x32_bf16 {vr(acc, 4)}, {vr(128 + (dl * 8 + m) * 4, 4)}, {vr(64 + (dl * 4 + mp) * 4, 4)}, {c}')
        self.wdma(steps)
        a(f'ds_write_b128 v26, v[16:19] offset:{1024 * lo}')
        a(f'ds_write_b128 v26, v[20:23] offset:{1024 * hi}')

    def conv_h1(self, ts, hooks):
        a = self.a
        lo, hi = 4 + ts, 7 - ts
        toks = {}

        def rd(dl):
            for mp in range(4, hi + 1):
                toks[dl, mp] = a(f'ds_read_b128 {vr(32 + ((dl & 1) * 4 + mp - 4) * 4, 4)}, v25 offset:{192 - 64 * dl + 512 * mp}')
        rd(0); rd(1)
        first = {lo: True, hi: True}
        for dl in range(4):
            for mp in range(hi + 1):
                for jt, acc in ((lo, 16), (hi, 20)):
                    m = jt - mp
                    if m < 0:
                        continue
                    if mp >= 4:
                        a.wait(toks[dl, mp])
                        b = 32 + ((dl & 1) * 4 + mp - 4) * 4
                    else:
                        b = 64 + (dl * 4 + mp) * 4
                    c = '0' if first[jt] else vr(acc, 4)
                    first[jt] = False
                    a(f'v_mfma_f32_16x16x32_bf16 {vr(acc, 4)}, {vr(128 + (dl * 8 + m) * 4, 4)}, {vr(b, 4)}, {c}')
            if dl + 2 < 4:
                rd(dl + 2)
            hooks(dl)
        a(f'ds_write_b128 v26, v[16:19] offset:{1024 * (lo - 4)}')
        a(f'ds_write_b128 v26, v[20:23] offset:{1024 * (hi - 4)}')

    def conv_epi(self):
        a = self.a
        toks = [a(f'ds_read_b128 {vr(32 + 4 * k, 4)}, v27 offset:{4096 * k}') for k in range(4)]
        for ch in range(2):
            for j in range(2):
                a(f'v_lshlrev_b32 v{48 + 4 * ch + 2 * j}, 16, v{8 + 2 * ch + j}')
                a(f'v_and_b32 v{49 + 4 * ch + 2 * j}, 0xffff0000, v{8 + 2 * ch + j}')
        for i in range(4):
            a(f'v_lshlrev_b32 v{56 + i}, 16, v{4 + i}\nv_and_b32 v{60 + i}, 0xffff0000, v{4 + i}')
        for ch in range(2):
            a.wait(toks[2 * ch + 1])
            sel = f'op_sel:[0,{ch},0] op_sel_hi:[1,{ch},1]'
            for j in range(2):
                y = 32 + 8 * ch + 2 * j
                a(f'v_pk_add_f32 {vr(y, 2)}, {vr(y, 2)}, {vr(y + 4, 2)}')
            for j in range(2):
                y = 32 + 8 * ch + 2 * j
                a(f'v_pk_fma_f32 {vr(y, 2)}, {vr(48 + 4 * ch + 2 * j, 2)}, {sp(S_MOD + 8)}, {vr(y, 2)} {sel}')
            for j in range(2):
                y = 32 + 8 * ch + 2 * j
                a(f'v_pk_fma_f32 {vr(y, 2)}, {vr(y, 2)}, {sp(S_MOD + 4)}, {vr(56 + 4 * ch + 2 * j, 2)} {sel}')
            for j in range(2):
                y = 32 + 8 * ch + 2 * j
                a(f'v_pk_mul_f32 {vr(y + 4, 2)}, {vr(y, 2)}, {sp(S_MOD + 6)} op_sel:[0,{ch}] op_sel_hi:[1,{ch}]')
        for i in range(4):
            a(f'v_cvt_pk_bf16_f32 v{8 + i}, v{36 + i}, v{44 + i}')
        a(f'global_store_dwordx4 v30, v[8:11], {sp(S_WS)} sc1')
        for i in range(4):
            a(f'v_cvt_pk_bf16_f32 v{4 + i}, v{32 + i}, v{40 + i}')
        return a(f'global_store_dwordx4 v29, v[4:7], {sp(S_WS)} sc1')

    def flag(self, va, vd):
        self.a(f'''
        v_mov_b32 v{va}, {T0}
        v_mov_b32 v{vd}, s{S_TAG}
        v_mov_b32 v{vd + 1}, s{S_TAG + 1}
        s_mov_b64 exec, 1
        global_store_dwordx2 v{va}, {vr(vd, 2)}, {sp(S_WS)} sc1
        s_mov_b64 exec, -1
        ''')

    def flag2(self, va, vd):
        self.a(f'''
        s_lshl_b32 {T0}, s{S_V}, 12
        s_lshl_b32 {T1}, s{S_P}, 4
        s_add_u32 {T0}, {T0}, {T1}
        s_add_u32 {T0}, {T0}, {WS_F2}
        ''')
        self.flag(va, vd)

    def sv_issue(self):
        a = self.a
        for k in range(8):
            t = a(f'global_load_dwordx4 {vr(128 + 4 * k, 4)}, v{12 if k < 4 else 31}, {sp(S_WS)} offset:{512 * (k & 3)} sc1')
        return t

    def sv_build(self, tok):
        a = self.a
        self.poll(self.sv_issue, [130 + 4 * k for k in range(8)], tok)
        for b in (128, 144):
            a(f'v_pk_add_f32 {vr(b, 2)}, {vr(b, 2)}, {vr(b + 4, 2)}')
            a(f'v_pk_add_f32 {vr(b + 8, 2)}, {vr(b + 8, 2)}, {vr(b + 12, 2)}')
            a(f'v_pk_add_f32 {vr(b, 2)}, {vr(b, 2)}, {vr(b + 8, 2)}')
            a(f'v_cvt_pk_bf16_f32 v{b}, v{b}, v{b + 1}')
        a(f'''
        v_lshlrev_b32 v146, 16, v144
        v_and_b32 v147, 0xffff0000, v144
        v_add_f32 v146, 1.0, v146
        v_add_f32 v147, 1.0, v147
        v_cvt_pk_bf16_f32 v144, v146, v147
        v_lshlrev_b32 v146, 2, v0
        v_add_u32 v146, {L_SV}, v146
        ds_write_b32 v146, v144
        ds_write_b32 v146, v128 offset:1024
        ''')

    def cf_addr(self):
        self.a(f'''
        v_lshrrev_b32 v16, 4, v1
        v_bfe_u32 v17, v1, 2, 2
        v_and_b32 v18, 1, v16
        v_lshrrev_b32 v19, 1, v17
        v_lshl_add_u32 v18, v18, 1, v19
        v_xor_b32 v18, s{S_U}, v18
        v_lshlrev_b32 v19, 11, v16
        v_lshl_add_u32 v19, v17, 7, v19
        v_lshl_add_u32 v19, v18, 5, v19
        v_and_b32 v18, 1, v1
        v_bfe_u32 v17, v1, 1, 1
        v_lshl_or_b32 v17, v18, 1, v17
        v_lshl_add_u32 v12, v17, 3, v19
        v_xor_b32 v13, 64, v12
        v_add_u32 v13, 1024, v13
        v_lshlrev_b32 v18, 10, v18
        v_lshl_add_u32 v18, v16, 4, v18
        v_add_u32 v14, {L_SV}, v18
        ''')

    def cfrags(self, hook):
        a = self.a
        toks = {}

        def rd(k):
            b = 72 + 12 * (k % 4)
            if k == 8:
                a('v_add_u32 v12, 0x10000, v12\nv_add_u32 v13, 0x10000, v13')
            a(f'ds_read_b128 {vr(b, 4)}, v14 offset:{64 * k}')
            for mat in range(2):
                for hf in range(2):
                    toks[k, mat] = a(f'ds_read_b64_tr_b16 {vr(b + 4 + 4 * mat + 2 * hf, 2)}, v{12 + mat} offset:{8192 * (k & 7) + 512 * hf}')
        rd(0); rd(1); rd(2)
        for k in range(16):
            b = 72 + 12 * (k % 4)
            a.wait(toks[k, 1])
            if k + 3 < 16:
                rd(k + 3)
            for mat in range(2):
                acc = vr(16 + 4 * mat, 4)
                a(f'v_mfma_f32_16x16x32_bf16 {acc}, {vr(b, 4)}, {vr(b + 4 + 4 * mat, 4)}, {"0" if k == 0 else acc}')
        hook()
        a(f'''
        s_mov_b32 vcc_lo, 0xffff0000
        s_mov_b32 vcc_hi, 0xffff0000
        s_lshl_b32 {T0}, s{S_U}, 10
        s_add_u32 {T0}, {T0}, {L_CF}
        v_lshl_add_u32 v15, v1, 4, {T0}
        s_mov_b32 {T0}, 0x05040100
        s_mov_b32 {T1}, 0x07060302
        s_mov_b32 {T2}, 0x07060100
        v_cndmask_b32 v16, v16, v20, vcc
        v_cndmask_b32 v17, v17, v21, vcc
        v_cvt_pk_bf16_f32 v24, v16, v17
        v_lshlrev_b32 v18, 16, v24
        v_and_b32 v19, 0xffff0000, v24
        v_sub_f32 v16, v16, v18
        v_sub_f32 v17, v17, v19
        v_cvt_pk_bf16_f32 v25, v16, v17
        v_lshlrev_b32 v18, 16, v25
        v_and_b32 v19, 0xffff0000, v25
        v_sub_f32 v16, v16, v18
        v_sub_f32 v17, v17, v19
        v_cvt_pk_bf16_f32 v26, v16, v17
        v_perm_b32 v20, v25, v24, {T0}
        v_perm_b32 v21, v24, v26, {T2}
        v_perm_b32 v22, v26, v25, {T1}
        v_mov_b32 v23, 0
        s_mov_b32 exec_lo, 0
        v_mov_b32 v20, 0
        v_mov_b32 v21, 0
        v_mov_b32 v22, 0
        s_mov_b32 exec_lo, -1
        ds_write_b128 v15, v[20:23]
        ''')

    def f2_addr(self):
        self.a(f'''
        s_lshr_b32 {T0}, s{S_RG1}, 3
        s_lshl_b32 {T0}, {T0}, 12
        s_add_u32 {T0}, {T0}, {WS_F2}
        v_lshl_add_u32 v70, v1, 4, {T0}
        ''')

    def f2_issue(self):
        for k in range(4):
            t = self.a(f'global_load_dwordx2 {vr(60 + 2 * k, 2)}, v70, {sp(S_WS)} offset:{1024 * k} sc1')
        return t

    def g1_addr(self):
        self.a(f'''
        v_lshrrev_b32 v8, 5, v1
        v_bfe_u32 v9, v1, 4, 1
        v_bfe_u32 v10, v1, 2, 2
        v_xor_b32 v11, v8, v9
        v_lshrrev_b32 v2, 1, v10
        v_lshl_add_u32 v11, v11, 1, v2
        v_lshlrev_b32 v2, 11, v8
        v_lshl_add_u32 v2, v9, 10, v2
        v_lshl_add_u32 v2, v10, 7, v2
        v_lshl_add_u32 v2, v11, 5, v2
        v_and_b32 v9, 1, v1
        v_bfe_u32 v10, v1, 1, 1
        v_lshl_or_b32 v7, v9, 1, v10
        v_lshl_add_u32 v2, v7, 3, v2
        v_xor_b32 v3, 32, v2
        v_xor_b32 v4, 64, v2
        v_xor_b32 v5, 0x60, v2
        v_and_b32 v9, 31, v1
        v_lshlrev_b32 v9, 2, v9
        v_lshl_add_u32 v9, v8, 9, v9
        s_lshl_b32 {T0}, s{S_RG1}, 15
        s_add_u32 {T1}, {T0}, {WS_X1S + 4096}
        v_add_u32 v6, {T1}, v9
        s_lshr_b32 {T1}, s{S_NB1}, 2
        s_lshl_b32 {T2}, {T1}, 12
        s_add_u32 {T0}, {T0}, {T2}
        s_add_u32 {T2}, {T0}, {WS_X1}
        v_lshl_add_u32 v68, v1, 4, {T2}
        s_lshr_b32 {T0}, {T0}, 3
        s_add_u32 {T0}, {T0}, {WS_ST2}
        v_lshrrev_b32 v8, 4, v1
        v_and_b32 v9, 7, v1
        v_lshl_add_u32 v8, v8, 3, v9
        v_lshl_add_u32 v69, v8, 4, {T0}
        ''')

    def xload(self, ks, j):
        if ks and ks % 8 == 0 and j == 0:
            self.a('v_add_u32 v6, 8192, v6')
        return self.a(f'global_load_dword v{8 + 4 * (ks % 8) + j}, v6, {sp(S_WS)} offset:{1024 * (ks % 8) + 128 * j - 4096} sc1')

    def g1_start(self):
        a = self.a
        tj = []

        def jobload():
            for k in range(4):
                tj.append(a(f'global_load_dwordx4 {vr(40 + 4 * k, 4)}, v68, {sp(S_WS)} offset:{1024 * k} sc1'))
        self.cond(JOB, jobload)
        self.xt = {}
        for ks in range(7):
            for j in range(4):
                self.xt[ks] = self.xload(ks, j)

        def job():
            a(f'v_mov_b32 v66, s{S_TAG}\nv_mov_b32 v67, s{S_TAG + 1}')
            for k in range(4):
                a.wait(tj[k])
                for i in range(4):
                    x = 40 + 4 * k + i
                    a(f'v_lshlrev_b32 v64, 16, v{x}\nv_and_b32 v65, 0xffff0000, v{x}')
                    if k == 0:
                        a(f'v_add_f32 v{56 + i}, v64, v65\nv_mul_f32 v{60 + i}, v64, v64')
                    else:
                        a(f'v_add_f32 v{56 + i}, v64, v{56 + i}\nv_fmac_f32 v{60 + i}, v64, v64\nv_add_f32 v{56 + i}, v65, v{56 + i}')
                    a(f'v_fmac_f32 v{60 + i}, v65, v65')
            for b in (56, 60):
                a(f'v_permlane32_swap_b32 v{b}, v{b + 2}\nv_permlane32_swap_b32 v{b + 1}, v{b + 3}')
            for b in (56, 60):
                a(f'v_add_f32 v{b}, v{b}, v{b + 2}\nv_add_f32 v{b + 1}, v{b + 1}, v{b + 3}')
            for b in (56, 60):
                a(f'v_permlane16_swap_b32 v{b}, v{b + 1}')
            a(f'''
            v_add_f32 v64, v56, v57
            v_add_f32 v65, v60, v61
            v_add_f32_dpp v64, v64, v64 row_ror:8 row_mask:0xf bank_mask:0xf
            v_add_f32_dpp v65, v65, v65 row_ror:8 row_mask:0xf bank_mask:0xf
            s_mov_b32 exec_lo, 0x00ff00ff
            s_mov_b32 exec_hi, 0x00ff00ff
            global_store_dwordx4 v69, v[64:67], {sp(S_WS)} sc1
            s_mov_b64 exec, -1
            ''')
        self.cond(JOB, job)

    def st2_issue(self):
        for k in range(4):
            t = self.a(f'global_load_dwordx4 {vr(8 + 4 * k, 4)}, v6, {sp(S_WS)} offset:{512 * k} sc1')
        return t

    def g1_main(self, nt):
        a = self.a
        xt = dict(self.xt)
        wt = {}

        def wread(ks, s):
            if ks == 16:
                a(f'v_add_u32 v{2 + s}, 0x10000, v{2 + s}')
            b = 40 + 16 * (ks & 1) + 4 * s
            a(f'ds_read_b64_tr_b16 {vr(b, 2)}, v{2 + s} offset:{4096 * (ks & 15)}')
            wt[ks, s] = a(f'ds_read_b64_tr_b16 {vr(b + 2, 2)}, v{2 + s} offset:{4096 * (ks & 15) + 512}')
        for s in range(nt):
            wread(0, s)
        spread = [[0], [1], [2], [3]] if nt == 4 else [[0, 1], [2], [3]]
        fill = L(f'''
        v_and_b32 v6, 3, v1
        v_bfe_u32 v7, v1, 2, 3
        v_lshl_add_u32 v6, v6, 3, v7
        v_lshrrev_b32 v7, 5, v1
        v_lshl_add_u32 v6, v7, 7, v6
        s_lshl_b32 {T0}, s{S_RG1}, 12
        s_add_u32 {T0}, {T0}, {WS_ST2}
        v_lshl_add_u32 v6, v6, 4, {T0}
        v_lshlrev_b32 v7, 4, v1
        v_add_u32 v7, {L_CF}, v7
        ''')
        ts2 = None
        for ks in range(32):
            for s in range(nt):
                a.wait(*([xt[ks]] if s == 0 else []), wt[ks, s])
                acc = vr(72 + 16 * s, 16)
                a(f'v_mfma_f32_32x32x16_bf16 {acc}, {vr(40 + 16 * (ks & 1) + 4 * s, 4)}, {vr(8 + 4 * (ks % 8), 4)}, {"0" if ks == 0 else acc}')
                if ks + 1 < 32:
                    wread(ks + 1, s)
                else:
                    wt[32, s] = a(f'ds_read_b128 {vr(40 + 4 * s, 4)}, v7 offset:{1024 * s}')
                if ks + 7 < 32:
                    for j in spread[s]:
                        xt[ks + 7] = self.xload(ks + 7, j)
                elif fill:
                    a(fill[:2]); fill = fill[2:]
                if ks == 28 and s == 0:
                    ts2 = self.st2_issue()
        self.stamp('g1 loop')
        self.poll(self.st2_issue, [10, 14, 18, 22], ts2)
        self.stamp('st2')
        a(f'''
        v_add_f32 v8, v8, v12
        v_add_f32 v9, v9, v13
        v_add_f32 v16, v16, v20
        v_add_f32 v17, v17, v21
        v_add_f32 v8, v8, v16
        v_add_f32 v9, v9, v17
        s_mov_b32 {T0}, {fhex(1 / 512)}
        v_mov_b32 v10, v8
        v_mov_b32 v11, v9
        v_mov_b32 v15, 0
        v_permlane32_swap_b32 v8, v10
        v_permlane32_swap_b32 v9, v11
        v_add_f32 v8, v8, v10
        v_add_f32 v9, v9, v11
        v_mul_f32 v8, {T0}, v8
        v_mul_f32 v9, {T0}, v9
        ''')
        self.meanstd(8, 9, 1, 10)
        a(f'''
        v_cvt_pk_bf16_f32 v12, -v8, -v8
        v_cvt_pk_bf16_f32 v13, -v8, v9
        v_cvt_pk_bf16_f32 v14, v9, v9
        v_and_b32 v16, 0xffff0000, v13
        v_rcp_f32 v16, v16
        ''')
        for s in range(nt):
            a.wait(wt[32, s])
            acc = vr(72 + 16 * s, 16)
            a(f'v_mfma_f32_32x32x16_bf16 {acc}, {vr(40 + 4 * s, 4)}, v[12:15], {acc}')
        a(f'''
        v_mul_f32 v16, v16, v16
        s_mul_i32 {T0}, s{S_RG1}, 114688
        s_lshr_b32 {T1}, s{S_NB1}, 1
        s_mul_i32 {T1}, {T1}, 7168
        s_add_u32 {T0}, {T0}, {T1}
        s_add_u32 {T0}, {T0}, {WS_HH}
        v_lshl_add_u32 v18, v1, 4, {T0}
        s_lshl_b32 {T1}, s{S_ODD}, 12
        v_add_u32 v17, {T1}, v18
        ''')
        for s in range(nt):
            b = 72 + 16 * s
            for j in range(8):
                a(f'v_mul_f32 v{b + j}, v{b + j}, v{b + 8 + j}')
            for j in range(8):
                a(f'v_mul_f32 v{b + j}, v16, v{b + j}')
            for j in range(4):
                a(f'v_cvt_pk_bf16_f32 v{b + 8 + j}, v{b + 2 * j}, v{b + 2 * j + 1}')
            a(f'global_store_dwordx4 v{17 if s < 3 else 18}, {vr(b + 8, 4)}, {sp(S_WS)} offset:{1024 * s} sc1')

    def flag3(self):
        self.a(f'''
        s_lshl_b32 {T0}, s{S_RG1}, 9
        s_lshl_b32 {T1}, s{S_NB1}, 4
        s_add_u32 {T0}, {T0}, {T1}
        s_add_u32 {T0}, {T0}, {WS_F3}
        ''')
        self.flag(67, 68)

    def wd_load(self, va):
        a = self.a
        a(f'''
        v_lshrrev_b32 v{va}, 5, v1
        v_lshlrev_b32 v{va}, 13, v{va}
        v_and_b32 v{va + 1}, 31, v1
        v_lshl_add_u32 v{va}, v{va + 1}, 2, v{va}
        s_mul_i32 {T0}, s{S_V}, {224 * 1024}
        s_lshl_b32 {T1}, s{S_DB}, 7
        s_add_u32 {T0}, {T0}, {T1}
        s_add_u32 {T0}, {T0}, 4096
        v_add_u32 v{va}, {T0}, v{va}
        s_mov_b32 s{S_T + 8}, 0x05040100
        s_mov_b32 s{S_T + 9}, 0x07060302
        ''')
        toks = {}

        def ld(s):
            for j in range(8):
                toks[s] = a(f'global_load_dword v{144 + 8 * s + j}, v{va}, {sp(S_WD)} offset:{1024 * j - 4096}')
            a(f'v_add_u32 v{va}, 16384, v{va}')

        def pm(s):
            a.wait(toks[s])
            src, dst = 144 + 8 * s, 136 + 8 * s
            for jj in range(4):
                a(f'v_perm_b32 v{dst + jj}, v{src + 2 * jj + 1}, v{src + 2 * jj}, s{S_T + 8}')
                a(f'v_perm_b32 v{dst + 4 + jj}, v{src + 2 * jj + 1}, v{src + 2 * jj}, s{S_T + 9}')
        dep = self.o.get('wd_depth', 4)
        for s in range(dep):
            ld(s)
        for s in range(14):
            pm(s)
            if s + dep < 14:
                ld(s + dep)

    def gb_issue(self):
        for k in range(4):
            t = self.a(f'global_load_dwordx4 {vr(8 + 4 * k, 4)}, v24, {sp(S_WS)} offset:{512 * k} sc1')
        return t

    def gb_build(self):
        a = self.a
        a(f'''
        s_add_u32 {T0}, s{S_DB}, 40
        s_lshl_b32 {T0}, {T0}, 11
        s_add_u32 {T0}, {T0}, {WS_MODP}
        v_and_b32 v25, 31, v1
        v_lshl_add_u32 v24, v25, 4, {T0}
        ''')
        t = self.gb_issue()
        self.poll(self.gb_issue, [10, 14, 18, 22], t)
        a(f'''
        v_add_f32 v8, v8, v12
        v_add_f32 v9, v9, v13
        v_add_f32 v16, v16, v20
        v_add_f32 v17, v17, v21
        v_add_f32 v8, v8, v16
        v_add_f32 v9, v9, v17
        v_cvt_pk_bf16_f32 v10, v8, v9
        v_lshlrev_b32 v8, 16, v10
        v_and_b32 v9, 0xffff0000, v10
        v_lshlrev_b32 v25, 3, v25
        v_add_u32 v25, {L_GB}, v25
        ds_write_b64 v25, v[8:9]
        ''')

    def g2_addr(self):
        self.a(f'''
        s_lshl_b32 {T0}, s{S_RG2}, 9
        s_lshl_b32 {T1}, s{S_V}, 6
        s_add_u32 {T0}, {T0}, {T1}
        s_add_u32 {T0}, {T0}, {WS_F3}
        v_and_b32 v2, 3, v1
        v_lshl_add_u32 v2, v2, 4, {T0}
        s_mul_i32 {T0}, s{S_RG2}, 114688
        s_mul_i32 {T1}, s{S_V}, 14336
        s_add_u32 {T0}, {T0}, {T1}
        s_add_u32 {T0}, {T0}, {WS_HH + 4096}
        v_lshl_add_u32 v3, v1, 4, {T0}
        v_add_u32 v4, 8192, v3
        s_lshl_b32 {T0}, s{S_RG2}, 15
        s_lshl_b32 {T1}, s{S_DB}, 12
        s_add_u32 {T0}, {T0}, {T1}
        s_add_u32 {T0}, {T0}, {WS_X1}
        v_and_b32 v5, 255, v0
        v_lshl_add_u32 v5, v5, 4, {T0}
        v_lshrrev_b32 v6, 7, v0
        v_bfe_u32 v7, v0, 4, 1
        v_lshl_add_u32 v6, v6, 1, v7
        v_bfe_u32 v7, v0, 5, 2
        v_lshl_add_u32 v6, v6, 2, v7
        v_lshlrev_b32 v7, 3, v0
        ''')

    def f3_issue(self):
        return self.a(f'global_load_dwordx2 v[70:71], v2, {sp(S_WS)} sc1')

    def g2_loads(self, half, tok):
        a = self.a
        self.poll(self.f3_issue, [70], tok)
        self.stamp(f'f3 h{half}')
        self.ht = []
        for s in range(14):
            self.ht.append(a(f'global_load_dwordx4 {vr(8 + 4 * s, 4)}, v{3 + s // 8}, {sp(S_WS)} offset:{1024 * (s % 8) - 4096} sc1'))
        self.tr = []
        self.cond(G0, lambda: self.tr.append(a(f'global_load_dwordx4 v[64:67], v5, {sp(S_WS)} sc1')))
        if half == 0:
            a(f'''
            v_add_u32 v2, {32 * 512}, v2
            v_add_u32 v3, {32 * 114688}, v3
            v_add_u32 v4, {32 * 114688}, v4
            v_add_u32 v5, {32 * 32768}, v5
            ''')

    def g2_mma(self, half):
        a = self.a
        for s in range(14):
            a.wait(self.ht[s])
            for e in range(2):
                acc = vr(72 + 16 * e, 16)
                a(f'v_mfma_f32_32x32x16_bf16 {acc}, {vr(8 + 4 * s, 4)}, {vr(136 + 8 * s + 4 * e, 4)}, {"0" if s == 0 else acc}')

        def stash():
            a(f'''
            v_bfe_u32 v68, v0, 3, 5
            v_mul_u32_u24 v68, 144, v68
            v_and_b32 v69, 7, v1
            v_lshl_add_u32 v68, v69, 4, v68
            v_add_u32 v68, {L_H + 4608 * half}, v68
            ''')
            a.wait(*self.tr)
            a('ds_write_b128 v68, v[64:67]')
        self.cond(G0, stash)
        a(f's_lshl_b32 {T0}, s{S_V}, 13\ns_add_u32 m0, {T0}, {half << 16}')
        self.stamp(f'mma{half}')

    def g2_partials(self):
        for r in range(32):
            self.a(f'ds_write_addtid_b32 v{72 + r} offset:{256 * r}')

    def g2_final(self, half):
        a = self.a
        if half:
            a('v_add_u32 v7, 0x10000, v7')
        toks = []
        for k in range(8):
            a(f'ds_read_b64 {vr(104 + 4 * k, 2)}, v7 offset:{8192 * k}')
            toks.append(a(f'ds_read_b64 {vr(106 + 4 * k, 2)}, v7 offset:{8192 * k + 4096}'))
        a(f'''
        v_and_b32 v248, 15, v1
        v_mul_u32_u24 v249, 288, v248
        v_lshl_add_u32 v249, v6, 2, v249
        v_add_u32 v249, {L_H + 4608 * half}, v249
        ds_read2_b32 v[68:69], v249 offset0:0 offset1:36
        v_lshlrev_b32 v249, 4, v248
        v_add_u32 v249, {L_GB}, v249
        ''')
        tg = a('ds_read_b128 v[252:255], v249')
        a(f'''
        s_lshl_b32 {T0}, s{S_RG2}, 15
        s_lshl_b32 {T1}, s{S_DB}, 7
        s_add_u32 {T0}, {T0}, {T1}
        s_add_u32 {T0}, {T0}, {half << 20}
        v_lshlrev_b32 v250, 10, v6
        v_lshl_add_u32 v250, v248, 3, v250
        v_add_u32 v250, {T0}, v250
        ''')
        for k in range(1, 8):
            a.wait(toks[k])
            for j in range(4):
                a(f'v_add_f32 v{104 + j}, v{104 + j}, v{104 + 4 * k + j}')
        a.wait(tg)
        a(f'''
        v_lshlrev_b32 v108, 16, v68
        v_and_b32 v109, 0xffff0000, v68
        v_lshlrev_b32 v110, 16, v69
        v_and_b32 v111, 0xffff0000, v69
        v_fmac_f32 v108, v252, v104
        v_fmac_f32 v109, v253, v106
        v_fmac_f32 v110, v254, v105
        v_fmac_f32 v111, v255, v107
        v_cvt_pk_bf16_f32 v108, v108, v109
        v_cvt_pk_bf16_f32 v109, v110, v111
        global_store_dwordx2 v250, v[108:109], {sp(S_OUT)}
        ''')

    def build(self):
        a = self.a
        self.front()
        self.chains()
        self.kprod()
        self.expand()
        st = {}

        def g0_a():
            t = self.s1_issue()
            self.afrags([])
            self.hbuild(t)

        def g1_a():
            self.afrags(self.take_w(3, 5))
            st['s1'] = self.s1_issue()
        self.cond(G0, g0_a, g1_a)
        self.barrier('B5')
        w4 = self.take_w(4, 0)
        self.cond(TS0, lambda: self.conv_h0(0, w4), lambda: self.conv_h0(1, w4))
        self.barrier('B6')

        def g0_b():
            st['x1'] = self.conv_epi()
            a(f'''
            v_lshrrev_b32 v12, 5, v0
            v_lshlrev_b32 v12, 11, v12
            v_and_b32 v31, 31, v1
            v_lshl_add_u32 v12, v31, 4, v12
            v_add_u32 v31, {WS_MODP + 32 * 2048}, v12
            v_add_u32 v12, {WS_MODP + 24 * 2048}, v12
            ''')

        def g1_b():
            if w4:
                a(f's_waitcnt vmcnt({2 * len(w4)})')
            self.hbuild(None if w4 else st['s1'])
            self.wdma(self.take_w(5, 0))
        self.cond(G0, g0_b, g1_b)
        self.stamp('preB6b')
        self.barrier()
        wl = [self.take_w(6 + dl, 0) for dl in range(4)]
        wl[3] += self.wsteps
        sv = []

        def hooks(dl):
            def g0h():
                if dl == self.o.get('f2pos', 1):
                    a.wait(st['x1'])
                    self.flag2(13, 14)
                    self.stamp('flag2')
                    sv.append(self.sv_issue())
            self.cond(G0, g0h, lambda: self.wdma(wl[dl]))
        self.cond(TS0, lambda: self.conv_h1(0, hooks), lambda: self.conv_h1(1, hooks))
        self.barrier('B7')

        def g0_c():
            self.f2_addr()
            st['f2'] = self.f2_issue()
            self.sv_build(sv)
            self.g1_addr()
            self.barrier('B8')

        def g1_c():
            tx1 = self.conv_epi()
            self.cf_addr()
            a('s_waitcnt vmcnt(2)')
            self.barrier('B8')

            def fl():
                a('s_waitcnt vmcnt(0)')
                self.flag2(27, 28)
                self.stamp('flag2')
            self.cfrags(fl)
            self.stamp('preB9')
            self.barrier('B9')
            self.g1_addr()
            if self.o['wd_early']:
                self.wd_load(8)
            self.f2_addr()
            st['f2b'] = self.f2_issue()
        self.cond(G0, g0_c, g1_c)
        self.poll(self.f2_issue, [60, 62, 64, 66], [st['f2'], st['f2b']])
        self.stamp('f2')
        self.cond(G0, lambda: a('s_setprio 2'), lambda: a('s_setprio 1'))
        self.g1_start()

        def b9():
            self.stamp('preB9')
            self.barrier('B9')
        self.cond(G0, b9)
        a('s_waitcnt lgkmcnt(0)')
        self.cond(f's_cmp_eq_u32 s{S_G}, s{S_ODD}', lambda: self.g1_main(4), lambda: self.g1_main(3))
        self.stamp('g1 end')
        self.g2_addr()

        def g0_d():
            a('s_setprio 0')
            a('s_waitcnt vmcnt(0)')
            self.flag3()
            self.stamp('flag3')
            self.cond(f's_cmp_eq_u32 s{S_V}, 0', self.gb_build)
            self.wd_load(8)
            self.stamp('wd')
            st['f3'] = self.f3_issue()

        def g1_d():
            self.f3_issue()
            a('s_waitcnt vmcnt(0)')
            self.flag3()
            self.stamp('flag3')
            if not self.o['wd_early']:
                self.wd_load(8)
            self.stamp('wd')
        self.cond(G0, g0_d, g1_d)
        self.g2_loads(0, st['f3'])
        self.g2_mma(0)
        self.barrier('Bx')
        t = self.f3_issue()
        self.g2_partials()
        self.g2_loads(1, t)
        self.barrier('By')
        self.g2_final(0)
        self.stamp('fin0')
        self.g2_mma(1)
        self.g2_partials()
        self.barrier('Bz')
        self.g2_final(1)

        def epoch():
            a(f's_mov_b32 {T0}, 0')
            self.flag(67, 68)
        a(f's_or_b32 {T0}, s2, s{S_V}')
        self.cond(f's_cmp_eq_u32 {T0}, 0', epoch)
        if self.stamps:
            self.stamp('end')
            a(f'''
            s_lshl_b32 {T0}, s2, 3
            s_add_u32 {T0}, {T0}, s{S_V}
            s_lshl_b32 {T0}, {T0}, 7
            s_add_u32 {T0}, {T0}, {WS_DBG}
            v_mov_b32 v2, {T0}
            s_waitcnt lgkmcnt(0)
            s_mov_b64 exec, 1
            ''')
            for k in range(len(self.stamps)):
                a(f'v_mov_b32 v{8 + k}, s{S_STAMP + 2 * k}')
                a(f'global_store_dword v2, v{8 + k}, {sp(S_WS)} offset:{4 * k}')
        a('L_exit:\ns_endpgm')
        nops = a.fix_hazards()
        errs = a.check_waits()
        assert len(a.barrier_counts) == 2, a.barrier_counts
        return nops, errs

    def source(self):
        ref = open(f'cdna_kernels/{NAME}.s.ref').read().split('\n')
        head = [l for l in ref if l.startswith(';') and 'offset' in l or l.startswith('; Kernarg')]
        k = NAME + '_kernel'
        return '\n'.join(head) + f'''
; @launch grid=(256,1,1) block=(512,1,1) lds={LDS_BYTES}
.amdgcn_target "amdgcn-amd-amdhsa--gfx950"
.text
.globl {k}
.p2align 8
.type {k},@function
{k}:
''' + self.a.text() + f'''.section .rodata,"a"
.p2align 6
.amdhsa_kernel {k}
  .amdhsa_next_free_vgpr 256
  .amdhsa_next_free_sgpr 102
  .amdhsa_accum_offset 256
  .amdhsa_group_segment_fixed_size 0
  .amdhsa_kernarg_size 144
  .amdhsa_user_sgpr_count 2
  .amdhsa_user_sgpr_kernarg_segment_ptr 1
  .amdhsa_system_sgpr_workgroup_id_x 1
  .amdhsa_float_denorm_mode_32 3
.end_amdhsa_kernel
'''


def make(path, **kw):
    g = Gen(**kw)
    nops, errs = g.build()
    open(path, 'w').write(g.source())
    return g, nops, errs


if __name__ == '__main__':
    import json
    out = sys.argv[1] if len(sys.argv) > 1 else f'cdna_kernels/{NAME}.s'
    g, nops, errs = make(out, opt=json.loads(sys.argv[2]) if len(sys.argv) > 2 else None)
    print('instructions', len(g.a.ins), 'nops inserted', nops, 'barrier counts', g.a.barrier_counts)
    for e in errs:
        print('WAIT:', e)
```

```python
import struct
import sys
from asmlib import Asm

NAME = 'adaLN_cond__ssm_conv_s4__glu_gated_bilinear__prompt'

WS_ST1 = 0x10000
WS_MODP = 0x20000
WS_F2 = 0x40000
WS_F3 = 0x50000
WS_ST2 = 0x80000
WS_DBG = 0xC0000
WS_XT = 0x100000
WS_X1 = 0x500000
WS_X1S = 0x700000
WS_HH = 0x900000

RS = 544
L_W = 0
L_P = 0
L_Q = 42 * RS
L_CP = 0
L_H = 131072
L_PART = L_H + 9216
L_KT = L_PART
L_SV = L_PART + 16384
L_CF = L_SV + 2048
L_SILU = L_CF + 4096
L_SP = L_SILU + 256
L_GB = L_SP + 512
LDS_BYTES = 163840
assert L_GB + 256 == LDS_BYTES

S_X, S_ARE, S_AIM, S_BRE, S_BIM, S_CRE, S_CIM, S_LDT, S_DSK = 4, 6, 8, 10, 12, 14, 16, 18, 20
S_WG, S_WU, S_WD, S_C, S_WM, S_OUT, S_DBG, S_WS = 24, 26, 28, 30, 32, 34, 36, 38
S_V = 3
S_P, S_XCD, S_IDX, S_G = 40, 41, 42, 43
S_TAG = 44
S_LDTV, S_DSKV = 46, 47
S_T = 48
S_SPIN = 58
S_U = 59
S_MB1, S_NB1, S_ODD, S_RG1, S_RG2, S_DB = 60, 61, 62, 63, 22, 23
S_WL, S_MJ = 36, 37
S_JOB = 18
S_MOD = 6
S_STAMP = 64

G0 = f's_cmp_eq_u32 s{S_G}, 0'
G1 = f's_cmp_eq_u32 s{S_G}, 1'
TS0 = f's_bitcmp0_b32 s{S_V}, 0'
MODW = f's_cmp_lt_u32 s{S_MJ}, 3'
JOB = f's_cmp_eq_u32 s{S_JOB}, 0'
W7 = f's_cmp_eq_u32 s{S_V}, 7'
ROLES = {G0: ('g0', True), G1: ('g0', False), TS0: ('ts0', True), MODW: ('modw', True), JOB: ('job', True), W7: ('w7', True)}

LOG2E = 0x3fb8aa3b
ONES = 0x3f803f80
T0, T1, T2, T3, T4, T5 = (f's{S_T + k}' for k in range(6))


def sp(n):
    return f's[{n}:{n + 1}]'


def vr(n, k=1):
    return f'v{n}' if k == 1 else f'v[{n}:{n + k - 1}]'


def fhex(x):
    return hex(struct.unpack('<I', struct.pack('<f', x))[0])


def L(text):
    return [l.strip() for l in text.strip().split('\n') if l.strip()]


class Gen:
    def __init__(self, stamps=None, opt=None):
        self.a = Asm()
        self.stamps = stamps
        self.stamp_names = {}
        self.o = dict(warm=1, wsched=[1, 1, 2, 3, 0, 2, 2, 2, 2, 1], wd_early=1)
        if opt:
            self.o.update(opt)
        self.wsteps = list(range(15, -1, -1))
        self.twd = []

    def stamp(self, name):
        if self.stamps and name in self.stamps:
            k = self.stamps.index(name)
            self.stamp_names[k] = name
            self.a(f's_memrealtime {sp(S_STAMP + 2 * k)}')

    def barrier(self, name=None):
        self.a('s_waitcnt lgkmcnt(0)\ns_barrier')
        self.stamp(name)

    def poll(self, issue, tags, first):
        a = self.a
        a.wait(*(first if isinstance(first, list) else [first]))
        chk, done = a.label('chk'), a.label('ok')
        a(f's_mov_b32 s{S_SPIN}, 0')
        a(f'{chk}:')
        a(f'v_cmp_ne_u64 vcc, {sp(S_TAG)}, {vr(tags[0], 2)}')
        for k, t in enumerate(tags[1:]):
            s = S_T + 2 * (k % 4)
            a(f'v_cmp_ne_u64 {sp(s)}, {sp(S_TAG)}, {vr(t, 2)}')
            if k % 4 == 3 or k == len(tags) - 2:
                for j in range(k % 4 + 1):
                    a(f's_or_b64 vcc, vcc, {sp(S_T + 2 * j)}')
        if len(tags) > 1:
            a(f's_cbranch_scc0 {done}')
        else:
            a(f's_cbranch_vccz {done}')
        a.ctx[chk] = True
        a(f's_add_u32 s{S_SPIN}, s{S_SPIN}, 1')
        a(f's_cmp_gt_u32 s{S_SPIN}, 0x40000')
        a(f's_cbranch_scc1 {done}')
        a('s_sleep 1')
        issue()
        a('s_waitcnt vmcnt(0)')
        a(f's_branch {chk}')
        del a.ctx[chk]
        a(f'{done}:')

    def cond(self, cmp, then, other=None):
        a = self.a
        name, val = ROLES.get(cmp, (None, True))
        if name in a.ctx:
            (then if a.ctx[name] == val else (other or (lambda: None)))()
            return
        els, end = a.label('else'), a.label('end')
        a(cmp)
        a(f's_cbranch_scc0 {els}')
        a.ins[-1].role = ROLES.get(cmp)
        name = name or els
        a.ctx[name] = val
        then()
        if other:
            a(f's_branch {end}')
        a(f'{els}:')
        a.ctx[name] = not val
        if other:
            other()
            a(f'{end}:')
        del a.ctx[name]

    def cmul(self, d, z, w, t):
        self.a(f'v_pk_mul_f32 {vr(t, 2)}, {vr(z, 2)}, {vr(w, 2)} op_sel:[0,0] op_sel_hi:[0,1]')
        self.a(f'v_pk_fma_f32 {vr(d, 2)}, {vr(z, 2)}, {vr(w, 2)}, {vr(t, 2)} op_sel:[1,1,0] op_sel_hi:[1,0,1] neg_lo:[1,0,0]')

    def cexp(self, d, ar, ai, k, t):
        a = self.a
        if k == 1:
            a(f'v_exp_f32 v{t}, v{ar}\nv_fract_f32 v{t + 1}, v{ai}')
        else:
            a(f'v_mul_f32 v{t}, {fhex(k)}, v{ar}\nv_mul_f32 v{t + 1}, {fhex(k)}, v{ai}')
            a(f'v_exp_f32 v{t}, v{t}\nv_fract_f32 v{t + 1}, v{t + 1}')
        a(f'v_cos_f32 v{d}, v{t + 1}\nv_sin_f32 v{d + 1}, v{t + 1}')
        a(f'v_pk_mul_f32 {vr(d, 2)}, {vr(d, 2)}, {vr(t, 2)} op_sel:[0,0] op_sel_hi:[1,0]')

    def take_w(self, slot, low):
        n = self.o['wsched'][slot]
        steps = [s for s in self.wsteps[:n] if s >= low]
        self.wsteps = self.wsteps[len(steps):]
        return steps

    def wdma(self, steps):
        a = self.a

        def body():
            for s in steps:
                a(f's_add_u32 m0, s{S_WL}, {L_W + s * 8192}')
                a(f'v_subrev_u32 v2, 114688, v2')
                a(f'global_load_lds_dwordx4 v2, {sp(S_WG)}')
                a(f's_add_u32 m0, s{S_WL}, {L_W + s * 8192 + 1024}')
                a(f'v_subrev_u32 v3, 114688, v3')
                self.twd.append(a(f'global_load_lds_dwordx4 v3, {sp(S_WU)}'))
        if steps:
            self.cond(G1, body)

    def warm(self):
        a = self.a

        def body():
            a(f'''
            s_cmp_eq_u32 s{S_U}, 1
            s_cselect_b32 {T0}, s{S_WU}, s{S_WG}
            s_cselect_b32 {T1}, s{S_WU + 1}, s{S_WG + 1}
            s_cmp_eq_u32 s{S_U}, 2
            s_cselect_b32 {T0}, s{S_WD}, {T0}
            s_cselect_b32 {T1}, s{S_WD + 1}, {T1}
            s_mul_i32 {T2}, s2, 7168
            v_min_u32 v107, 55, v1
            s_mov_b32 m0, {L_GB}
            v_lshl_add_u32 v107, v107, 7, {T2}
            global_load_lds_dword v107, {sp(S_T)}
            ''')
        a(f's_sub_u32 {T0}, s{S_V}, 4')
        self.cond(f's_cmp_lt_u32 {T0}, 3', body)

    def front(self):
        a = self.a
        a('s_cmp_ge_u32 s2, 256\ns_cbranch_scc1 L_exit')
        a('s_load_dwordx16 s[4:19], s[0:1], 0\ns_load_dwordx16 s[20:35], s[0:1], 64\ns_load_dwordx2 s[38:39], s[0:1], 136')
        self.stamp('start')
        a(f'''
        v_lshrrev_b32 v2, 6, v0
        v_and_b32 v1, 63, v0
        v_readfirstlane_b32 s{S_V}, v2
        s_and_b32 s{S_XCD}, s2, 7
        s_lshr_b32 s{S_IDX}, s2, 3
        s_lshl_b32 s{S_P}, s{S_XCD}, 5
        s_add_u32 s{S_P}, s{S_P}, s{S_IDX}
        s_lshr_b32 s{S_G}, s{S_V}, 2
        s_and_b32 s{S_U}, s{S_V}, 3
        ''')
        a(f'''
        v_and_b32 v32, 1, v1
        v_bfe_u32 v33, v1, 1, 1
        v_lshl_or_b32 v31, v32, 1, v33
        v_and_b32 v33, 60, v1
        v_lshl_add_u32 v32, v31, 11, v33
        s_lshl_b32 {T0}, s2, 13
        s_lshl_b32 {T1}, s{S_V}, 7
        s_add_u32 {T0}, {T0}, {T1}
        v_add_u32 v32, {T0}, v32
        ''')
        a(f'''
        s_lshl_b32 {T0}, s{S_P}, 9
        s_lshl_b32 {T1}, s{S_U}, 7
        s_add_u32 {T0}, {T0}, {T1}
        v_lshl_add_u32 v33, v1, 1, {T0}
        ''')
        for r in range(100, 106):
            a(f'v_mov_b32 v{r}, 0')
        a(f'''
        s_and_b32 {T2}, s2, 3
        s_lshl_b32 {T3}, {T2}, 7
        s_lshl_b32 {T4}, s{S_V}, 4
        s_add_u32 {T3}, {T3}, {T4}
        v_lshrrev_b32 v34, 3, v1
        v_add_u32 v34, {T3}, v34
        v_mul_u32_u24 v34, 6144, v34
        v_and_b32 v35, 7, v1
        v_lshl_add_u32 v34, v35, 4, v34
        s_lshr_b32 {T3}, s2, 2
        s_lshl_b32 {T3}, {T3}, 7
        v_add_u32 v34, {T3}, v34
        v_add_u32 v35, {8 * 6144}, v34
        s_lshl_b32 {T2}, {T2}, 8
        v_lshl_add_u32 v36, v1, 2, {T2}
        s_lshl_b32 {T4}, s{S_V}, 11
        s_lshl_b32 {T5}, s{S_P}, 2
        s_waitcnt lgkmcnt(0)
        ''')
        self.stamp('karg')
        a(f'global_load_dword v4, v32, {sp(S_X)}')
        a(f'global_load_dword v5, v32, {sp(S_X)} offset:1024')
        a(f'global_load_dword v8, v32, {sp(S_X)} offset:64')
        tx = a(f'global_load_dword v9, v32, {sp(S_X)} offset:1088')
        a(f's_load_dwordx2 {sp(S_TAG)}, {sp(S_WS)}, 0')
        a(f's_load_dword s{S_LDTV}, {sp(S_LDT)}, {T5}')
        a(f's_load_dword s{S_DSKV}, {sp(S_DSK)}, {T5}')
        a(f'global_load_short_d16_hi v100, v33, {sp(S_ARE)}')
        self.tp = [a(f'global_load_short_d16_hi v101, v33, {sp(S_AIM)}')]

        def g1loads():
            for r, s in ((102, S_BRE), (103, S_BIM), (104, S_CRE), (105, S_CIM)):
                t = a(f'global_load_short_d16_hi v{r}, v33, {sp(s)}')
            self.tp.append(t)
        self.cond(G1, g1loads)
        self.tc = a(f'global_load_dword v106, v36, {sp(S_C)}')
        a(f'''
        s_cmp_lt_u32 s2, 192
        s_cselect_b32 {T0}, 0, 2048
        s_cselect_b64 exec, -1, 1
        v_subrev_u32 v34, {T0}, v34
        v_subrev_u32 v35, {T0}, v35
        s_add_u32 m0, {T4}, {L_KT}
        global_load_lds_dwordx4 v34, {sp(S_WM)}
        s_add_u32 m0, {T4}, {L_KT + 1024}
        ''')
        self.tw = a(f'global_load_lds_dwordx4 v35, {sp(S_WM)}')
        a('s_mov_b64 exec, -1')
        if self.o['warm'] == 1:
            self.warm()
        self.stamp('issued')
        a(f'''
        v_mov_b32 v40, 0
        v_mov_b32 v41, 0
        v_bfe_u32 v37, v0, 6, 1
        v_mul_u32_u24 v37, 4608, v37
        v_lshl_add_u32 v37, v1, 3, v37
        v_add_u32 v37, {L_H}, v37
        ds_write_b64 v37, v[40:41]
        ''')
        a(f'''
        v_and_b32 v37, 255, v0
        v_lshlrev_b32 v37, 3, v37
        v_sub_u32 v37, 2037, v37
        v_cvt_f32_i32 v37, v37
        s_mul_i32 {T0}, s{S_G}, 9216
        s_add_u32 {T0}, {T0}, {L_KT}
        v_mov_b32 v44, {L_H}
        s_movk_i32 {T1}, 0xf8
        ''')
        for k in range(0, 11, 2):
            a('v_add_f32 v38, 1.0, v37')
            a('v_cvt_pk_bf16_f32 v40, v37, v38')
            a('v_add_f32 v37, 2.0, v37')
            for h in range(2):
                if k + h > 10:
                    continue
                a('v_lshlrev_b32 v41, 16, v40' if h == 0 else 'v_and_b32 v41, 0xffff0000, v40')
                if k + h < 3:
                    a('v_cmp_gt_f32 vcc, 0, v41')
                a(f'''
                v_cvt_u32_f32 v41, v41
                v_lshrrev_b32 v42, 5, v41
                v_bfi_b32 v42, {T1}, v42, v41
                v_bfe_u32 v43, v41, 3, 5
                v_and_b32 v42, 0xff, v42
                v_lshl_add_u32 v43, v43, 2, {T0}
                v_lshl_add_u32 v{108 + k + h}, v42, 7, v43
                ''')
                if k + h < 3:
                    a(f'v_cndmask_b32 v{108 + k + h}, v{108 + k + h}, v44, vcc')
        a(f'''
        s_lshl_b32 {T0}, s2, 14
        s_add_u32 {T0}, {T0}, {T4}
        s_add_u32 {T0}, {T0}, {WS_XT}
        v_lshl_add_u32 v98, v1, 4, {T0}
        v_and_b32 v33, 3, v1
        v_lshrrev_b32 v34, 4, v1
        v_lshlrev_b32 v33, 4, v33
        v_lshl_add_u32 v33, v34, 2, v33
        s_lshl_b32 {T0}, s{S_V}, 6
        s_add_u32 {T0}, {T0}, {L_SP}
        v_add_u32 v97, {T0}, v33
        s_waitcnt lgkmcnt(0)
        s_add_u32 s{S_TAG}, s{S_TAG}, 1
        s_addc_u32 s{S_TAG + 1}, s{S_TAG + 1}, 0
        s_lshl_b32 {T0}, s{S_LDTV}, 16
        s_and_b32 {T1}, s{S_LDTV}, 0xffff0000
        s_cmp_ge_u32 s{S_U}, 2
        s_cselect_b32 {T0}, {T1}, {T0}
        v_mov_b32 v32, {LOG2E}
        v_mul_f32 v32, {T0}, v32
        v_exp_f32 v32, v32
        s_mov_b32 {T0}, {ONES}
        v_mov_b32 v6, s{S_TAG}
        v_mov_b32 v7, s{S_TAG + 1}
        v_mov_b32 v10, s{S_TAG}
        v_mov_b32 v11, s{S_TAG + 1}
        v_cvt_pk_bf16_f32 v32, v32, v32
        v_and_b32 v32, 0xffff0000, v32
        ''')
        self.stamp('pre')
        self.cond(G0, lambda: a.wait(tx), lambda: a.wait(tx))
        self.stamp('xarr')
        a(f'global_store_dwordx4 v98, v[4:7], {sp(S_WS)} sc1')
        a(f'global_store_dwordx4 v98, v[8:11], {sp(S_WS)} offset:1024 sc1')
        a(f'''
        v_dot2_f32_bf16 v36, v4, {T0}, 0
        v_dot2_f32_bf16 v37, v5, {T0}, 0
        v_dot2_f32_bf16 v38, v4, v4, 0
        v_dot2_f32_bf16 v39, v5, v5, 0
        v_dot2_f32_bf16 v36, v8, {T0}, v36
        v_dot2_f32_bf16 v37, v9, {T0}, v37
        v_dot2_f32_bf16 v38, v8, v8, v38
        v_dot2_f32_bf16 v39, v9, v9, v39
        s_lshr_b32 {T0}, s{S_U}, 1
        s_and_b32 {T1}, s{S_U}, 1
        s_lshl_b32 {T1}, {T1}, 8
        v_permlane32_swap_b32 v36, v38
        v_permlane32_swap_b32 v37, v39
        v_add_f32 v36, v36, v38
        v_add_f32 v37, v37, v39
        v_permlane16_swap_b32 v36, v37
        v_add_f32 v36, v36, v37
        v_add_f32_dpp v36, v36, v36 row_ror:4 row_mask:0xf bank_mask:0xf
        v_add_f32_dpp v36, v36, v36 row_ror:8 row_mask:0xf bank_mask:0xf
        ds_write_b32 v97, v36
        ''')
        self.stamp('part')

    def chains(self):
        a = self.a

        def scale():
            a.wait(*self.tp)
            a(f'''
            v_mul_f32 v33, v32, v100
            v_mul_f32 v34, v32, v101
            v_mul_f32 v33, {LOG2E}, v33
            v_mul_f32 v34, 0.15915494, v34
            ''')

        def qchain():
            a(f's_mul_i32 {T0}, {T0}, {32 * RS}\ns_add_u32 {T0}, {T0}, {T1}\ns_add_u32 m0, {T0}, {L_Q}')
            scale()
            self.cexp(36, 33, 34, 8.0, 38)
            a('v_mov_b32 v44, 0x3f80\nds_write_addtid_b32 v44 offset:0')
            z = 36
            for b in range(1, 32):
                c = 44 + (b & 1)
                a(f'v_cvt_pk_bf16_f32 v{c}, v{z}, v{z + 1}')
                if b < 31:
                    n = 40 + 2 * (b & 1)
                    self.cmul(n, z, 36, 38)
                    z = n
                a(f'ds_write_addtid_b32 v{c} offset:{RS * b}')

        def pchain():
            a(f's_mul_i32 {T0}, {T0}, {21 * RS}\ns_add_u32 {T0}, {T0}, {T1}\ns_add_u32 m0, {T0}, {L_P}')
            scale()
            a('v_mul_f32 v102, v32, v102\nv_mul_f32 v103, v32, v103')
            self.cmul(48, 104, 102, 38)
            self.cexp(36, 33, 34, 1, 38)
            self.cexp(40, 33, 34, 256.0, 38)
            cnt = [0]

            def put(row, z):
                c = 44 + (cnt[0] & 1); cnt[0] += 1
                a(f'v_cvt_pk_bf16_f32 v{c}, v{z}, -v{z + 1}')
                a(f'ds_write_addtid_b32 v{c} offset:{RS * row}')
            put(0, 48)
            for r in range(1, 8):
                self.cmul(48 + 2 * r, 46 + 2 * r, 36, 38)
                put(r, 48 + 2 * r)
            for k in range(4):
                self.cmul(50 + 4 * k, 48 + 4 * k, 40, 38)
                put(8 + k, 50 + 4 * k)
            self.cmul(48, 50, 40, 38); put(12, 48)
            self.cmul(56, 58, 40, 38); put(13, 56)
            self.cmul(50, 48, 40, 38); put(14, 50)
            self.cmul(58, 56, 40, 38); put(15, 58)
            z = 50
            for r in range(16, 21):
                n = 48 if z == 50 else 50
                self.cmul(n, z, 40, 38); put(r, n)
                z = n

            def silu():
                a.wait(self.tc)
                a(f'''
                v_lshlrev_b32 v36, 16, v106
                v_and_b32 v37, 0xffff0000, v106
                v_mul_f32 v38, {hex(LOG2E | 0x80000000)}, v36
                v_mul_f32 v39, {hex(LOG2E | 0x80000000)}, v37
                v_exp_f32 v38, v38
                v_exp_f32 v39, v39
                s_mov_b32 m0, {L_SILU}
                v_add_f32 v38, 1.0, v38
                v_add_f32 v39, 1.0, v39
                v_rcp_f32 v38, v38
                v_rcp_f32 v39, v39
                v_mul_f32 v36, v36, v38
                v_mul_f32 v37, v37, v39
                v_cvt_pk_bf16_f32 v36, v36, v37
                ds_write_addtid_b32 v36 offset:0
                ''')
            self.cond(W7, silu)
        self.cond(G0, qchain, pchain)
        self.stamp('chain')
        if self.o['warm'] == 2:
            self.warm()
        a(f'''
        v_and_b32 v36, 15, v1
        v_lshrrev_b32 v37, 4, v1
        v_mul_u32_u24 v38, {RS}, v36
        v_lshl_add_u32 v38, v37, 4, v38
        s_lshr_b32 {T0}, s{S_U}, 1
        s_and_b32 {T1}, s{S_U}, 1
        s_mul_i32 {T2}, s{S_G}, {21 * RS}
        s_mul_i32 {T3}, {T0}, {16 * RS}
        s_add_u32 {T2}, {T2}, {T3}
        v_add_u32 v120, {T2}, v38
        s_mul_i32 {T2}, s{S_G}, {32 * RS}
        s_mul_i32 {T3}, {T1}, {16 * RS}
        s_add_u32 {T2}, {T2}, {T3}
        s_add_u32 {T2}, {T2}, {L_Q}
        v_add_u32 v121, {T2}, v38
        v_bfe_u32 v38, v1, 2, 2
        v_lshl_add_u32 v38, v37, 3, v38
        v_lshlrev_b32 v38, 7, v38
        v_and_b32 v39, 3, v1
        v_lshl_add_u32 v38, v39, 3, v38
        s_lshl_b32 {T2}, s{S_V}, 5
        s_add_u32 {T2}, {T2}, {L_KT}
        v_add_u32 v90, {T2}, v38
        v_lshlrev_b32 v91, 4, v37
        v_add_u32 v91, {L_SILU}, v91
        s_lshr_b32 s{S_MJ}, s2, 6
        s_lshl_b32 {T2}, s{S_G}, 2
        s_add_u32 s{S_MJ}, s{S_MJ}, {T2}
        ''')
        a.wait(self.tw)
        self.stamp('preB2')
        self.barrier('B2')

    def meanstd(self, m, e2, n, t):
        a = self.a
        for k in range(n):
            a(f'v_fma_f32 v{e2 + k}, -v{m + k}, v{m + k}, v{e2 + k}')
        for k in range(n):
            a(f'v_max_f32 v{e2 + k}, 0, v{e2 + k}')
        o = e2 + (1 if n == 2 else 0)
        for add in (True, False):
            a(f'v_cvt_pk_bf16_f32 v{t}, v{e2}, v{o}')
            a(f'v_lshlrev_b32 v{e2}, 16, v{t}')
            if n == 2:
                a(f'v_and_b32 v{o}, 0xffff0000, v{t}')
            for k in range(n):
                a(f'v_add_f32 v{e2 + k}, {fhex(1e-5)}, v{e2 + k}' if add else f'v_sqrt_f32 v{e2 + k}, v{e2 + k}')

    def stats_final(self):
        a = self.a
        a(f'''
        v_lshlrev_b32 v38, 4, v36
        v_add_u32 v38, {L_SP}, v38
        ds_read_b128 v[48:51], v38
        ds_read_b128 v[52:55], v38 offset:256
        s_lshl_b32 {T2}, s2, 6
        s_add_u32 {T2}, {T2}, {WS_ST1}
        v_lshl_add_u32 v39, v31, 4, {T2}
        s_mov_b32 {T2}, {fhex(1 / 512)}
        s_waitcnt lgkmcnt(0)
        ''')
        for r in range(48, 52):
            a(f'v_add_f32 v{r}, v{r}, v{r + 4}')
        for sh in (4, 8):
            for r in range(48, 52):
                a(f'v_add_f32_dpp v{r}, v{r}, v{r} row_ror:{sh} row_mask:0xf bank_mask:0xf')
        for r in range(48, 52):
            a(f'v_mul_f32 v{r}, {T2}, v{r}')
        self.meanstd(48, 50, 2, 52)
        a(f'''
        v_cvt_pk_bf16_f32 v4, v48, v50
        v_cvt_pk_bf16_f32 v5, v49, v51
        s_mov_b64 exec, 15
        global_store_dwordx4 v39, v[4:7], {sp(S_WS)} sc1
        s_mov_b64 exec, -1
        ''')

    def mod_job(self):
        a = self.a
        toks = []
        for ks in range(4):
            a(f'ds_read_b128 {vr(192 + 8 * ks, 4)}, v91 offset:{64 * ks}')
            a(f'ds_read_b64_tr_b16 {vr(196 + 8 * ks, 2)}, v90 offset:{4096 * ks}')
            toks.append(a(f'ds_read_b64_tr_b16 {vr(198 + 8 * ks, 2)}, v90 offset:{4096 * ks + 512}'))
        a(f'''
        v_lshlrev_b32 v92, 3, v1
        v_add_u32 v93, 4, v92
        ''')
        for ks in range(4):
            a.wait(toks[ks])
            a(f'v_mfma_f32_16x16x32_bf16 v[44:47], {vr(192 + 8 * ks, 4)}, {vr(196 + 8 * ks, 4)}, {"0" if ks == 0 else "v[44:47]"}')
        a('ds_bpermute_b32 v4, v92, v44')
        self.tb = a('ds_bpermute_b32 v5, v93, v44')

    def mod_store(self):
        a = self.a
        a(f'''
        s_lshl_b32 {T2}, s2, 9
        s_lshl_b32 {T3}, s{S_V}, 7
        s_add_u32 {T2}, {T2}, {T3}
        s_add_u32 {T2}, {T2}, {WS_MODP}
        v_lshl_add_u32 v94, v1, 4, {T2}
        ''')
        a.wait(self.tb)
        a(f'''
        s_mov_b64 exec, 255
        global_store_dwordx4 v94, v[4:7], {sp(S_WS)} sc1
        s_mov_b64 exec, -1
        ''')

    def kprod(self):
        a = self.a
        self.cond(f's_cmp_eq_u32 s{S_V}, 4', self.stats_final)
        self.cond(MODW, self.mod_job)
        toks = []
        for ks in range(8):
            a(f'ds_read_b128 {vr(128 + 8 * ks, 4)}, v120 offset:{64 * ks}')
            toks.append(a(f'ds_read_b128 {vr(132 + 8 * ks, 4)}, v121 offset:{64 * ks}'))
            if ks == 2:
                self.cond(MODW, self.mod_store)
        self.stamp('jobs')
        a(f'''
        s_cmp_eq_u32 {T0}, 0
        s_mov_b32 {T2}, 0x41414020
        s_cselect_b32 {T2}, 0x10080400, {T2}
        s_mov_b32 {T3}, 0x01010108
        s_cselect_b32 {T3}, 0x04020101, {T3}
        v_lshlrev_b32 v37, 3, v37
        v_bfe_u32 v38, {T2}, v37, 8
        v_bfe_u32 v39, {T3}, v37, 8
        s_mul_i32 {T2}, s{S_G}, 9216
        s_lshl_b32 {T1}, {T1}, 6
        s_add_u32 {T2}, {T2}, {T1}
        s_add_u32 {T2}, {T2}, {L_KT}
        v_lshl_add_u32 v36, v36, 2, {T2}
        v_lshl_add_u32 v122, v38, 7, v36
        v_lshl_add_u32 v123, v39, 7, v122
        v_lshl_add_u32 v124, v39, 7, v123
        v_lshl_add_u32 v125, v39, 7, v124
        s_and_b32 s{S_MB1}, s{S_XCD}, 1
        s_lshl_b32 s{S_MB1}, s{S_MB1}, 2
        s_and_b32 {T0}, s{S_IDX}, 3
        s_add_u32 s{S_MB1}, s{S_MB1}, {T0}
        s_lshr_b32 s{S_NB1}, s{S_XCD}, 1
        s_lshl_b32 s{S_NB1}, s{S_NB1}, 3
        s_lshr_b32 s{S_DB}, s{S_IDX}, 2
        s_add_u32 s{S_NB1}, s{S_NB1}, s{S_DB}
        s_and_b32 s{S_ODD}, s{S_NB1}, 1
        s_lshl_b32 s{S_RG2}, s{S_XCD}, 2
        s_add_u32 s{S_RG2}, s{S_RG2}, {T0}
        s_lshl_b32 s{S_RG1}, s{S_G}, 5
        s_lshl_b32 {T0}, s{S_MB1}, 2
        s_add_u32 s{S_RG1}, s{S_RG1}, {T0}
        s_add_u32 s{S_RG1}, s{S_RG1}, s{S_U}
        s_and_b32 s{S_JOB}, s{S_NB1}, 3
        s_xor_b32 s{S_JOB}, s{S_JOB}, s{S_U}
        s_lshl_b32 s{S_WL}, s{S_U}, 11
        ''')

        def wsrc():
            a(f'''
            v_bfe_u32 v37, v1, 1, 2
            v_bfe_u32 v38, v1, 4, 1
            v_xor_b32 v37, v37, v38
            s_and_b32 {T0}, s{S_U}, 1
            s_lshl_b32 {T0}, {T0}, 1
            v_xor_b32 v37, {T0}, v37
            v_xor_b32 v38, 2, v37
            v_add_u32 v37, s{S_ODD}, v37
            v_add_u32 v38, s{S_ODD}, v38
            v_and_b32 v37, 3, v37
            v_and_b32 v38, 3, v38
            v_bfe_u32 v39, v0, 3, 5
            v_mul_u32_u24 v39, 3584, v39
            v_and_b32 v48, 1, v1
            v_lshl_add_u32 v39, v48, 4, v39
            s_mul_i32 {T0}, s{S_NB1}, 112
            s_lshl_b32 {T1}, s{S_ODD}, 4
            s_sub_u32 {T0}, {T0}, {T1}
            s_add_u32 {T0}, {T0}, {16 * 114688}
            v_add_u32 v39, {T0}, v39
            v_lshl_add_u32 v2, v37, 5, v39
            v_lshl_add_u32 v3, v38, 5, v39
            ''')
            self.wdma(self.take_w(0, 8))
        self.cond(G1, wsrc)
        for ks in range(8):
            a.wait(toks[ks])
            a(f'v_mfma_f32_16x16x32_bf16 v[40:43], {vr(128 + 8 * ks, 4)}, {vr(132 + 8 * ks, 4)}, {"0" if ks == 0 else "v[40:43]"}')
        a(f'''
        v_and_b32 v36, 255, v0
        s_mul_i32 {T0}, s{S_G}, 16640
        v_lshl_add_u32 v126, v36, 4, {T0}
        v_bfe_u32 v36, v1, 1, 3
        v_mul_u32_u24 v36, 4160, v36
        v_and_b32 v37, 1, v1
        v_lshl_add_u32 v127, v37, 4, v36
        ''')
        a('s_barrier')
        for i in range(4):
            a(f'ds_write_b32 v{122 + i}, v{40 + i}')
        self.wdma(self.take_w(1, 5))
        self.barrier('B3')

    def s1_issue(self):
        a = self.a
        a(f'global_load_dwordx4 v[48:51], v15, {sp(S_WS)} sc1')
        a(f'global_load_dwordx4 v[40:43], v14, {sp(S_WS)} sc1')
        a(f'global_load_dwordx4 v[44:47], v14, {sp(S_WS)} offset:16 sc1')
        a(f'global_load_dwordx4 v[32:35], v12, {sp(S_WS)} sc1')
        return a(f'global_load_dwordx4 v[36:39], v13, {sp(S_WS)} sc1')

    def expand(self):
        a = self.a
        for k in range(11):
            t = a(f'ds_read_b32 v{64 + k}, v{108 + k}')
        a(f'''
        v_lshrrev_b32 v36, 2, v0
        v_lshlrev_b32 v36, 15, v36
        v_and_b32 v37, 3, v1
        v_lshl_add_u32 v36, v37, 4, v36
        s_lshl_b32 {T0}, s{S_P}, 6
        s_add_u32 {T0}, {T0}, {WS_XT}
        v_add_u32 v12, {T0}, v36
        v_add_u32 v13, 16384, v12
        v_lshlrev_b32 v14, 5, v0
        v_add_u32 v14, {WS_ST1}, v14
        v_bfe_u32 v38, v1, 2, 2
        v_cmp_eq_u32 vcc, 3, v38
        v_mov_b32 v76, 0
        v_mov_b32 v77, 0
        v_addc_co_u32 v36, vcc, 0, v38, vcc
        v_mov_b32 v78, 0
        v_mov_b32 v79, 0
        ''')
        a(f'ds_write_b128 v127, v[76:79] offset:{L_CP + 4096}')
        a.wait(t)
        fill = L(f'''
        v_lshlrev_b32 v36, 14, v36
        v_lshl_add_u32 v36, v37, 9, v36
        s_lshl_b32 {T0}, s{S_XCD}, 11
        s_lshl_b32 {T1}, s{S_IDX}, 4
        s_add_u32 {T0}, {T0}, {T1}
        s_add_u32 {T0}, {T0}, {WS_MODP}
        v_add_u32 v15, {T0}, v36
        v_mul_u32_u24 v36, 4160, v37
        v_lshrrev_b32 v37, 4, v1
        v_lshl_add_u32 v36, v37, 4, v36
        v_lshlrev_b32 v38, 3, v38
        v_sub_u32 v36, v36, v38
        s_lshr_b32 {T0}, s{S_U}, 1
        s_lshl_b32 {T1}, {T0}, 8
        s_mul_i32 {T2}, s{S_G}, 16640
        s_sub_u32 {T2}, {T2}, {T1}
        s_add_u32 {T2}, {T2}, {L_CP + 280}
        v_add_u32 v24, {T2}, v36
        ''')
        for c in range(4):
            for k in range(4):
                lo = c - 2 * k + 7
                a(f'v_cvt_pk_bf16_f32 v{80 + 4 * c + k}, v{64 + lo}, v{64 + lo - 1}')
            a(f'ds_write_b128 v126, {vr(80 + 4 * c, 4)} offset:{L_CP + 4160 * c}')
        a(fill)
        self.wdma(self.take_w(2, 5))
        self.barrier('B4')

    def afrags(self, steps):
        a = self.a
        fill = L(f'''
        v_lshrrev_b32 v57, 4, v1
        v_and_b32 v56, 15, v1
        v_lshlrev_b32 v58, 5, v56
        v_lshl_add_u32 v58, v57, 4, v58
        s_lshr_b32 {T0}, s{S_U}, 1
        s_lshl_b32 {T1}, {T0}, 8
        s_mul_i32 {T2}, s{S_G}, 4608
        s_sub_u32 {T2}, {T2}, {T1}
        s_add_u32 {T2}, {T2}, {L_H + 288}
        v_add_u32 v25, {T2}, v58
        v_lshl_add_u32 v56, v57, 2, v56
        v_and_b32 v56, 15, v56
        v_lshl_add_u32 v56, v57, 4, v56
        s_lshr_b32 {T2}, s{S_V}, 1
        s_lshl_b32 {T2}, {T2}, 12
        s_add_u32 {T2}, {T2}, {L_PART}
        v_lshl_add_u32 v26, v56, 4, {T2}
        v_lshrrev_b32 v56, 2, v1
        v_and_b32 v57, 3, v1
        v_lshl_add_u32 v56, v57, 2, v56
        v_and_b32 v56, 15, v56
        v_lshl_add_u32 v56, v57, 4, v56
        s_lshl_b32 {T2}, s{S_U}, 10
        s_add_u32 {T2}, {T2}, {L_PART}
        v_lshl_add_u32 v27, v56, 4, {T2}
        v_lshlrev_b32 v28, 3, v0
        v_add_u32 v28, {L_H + 512}, v28
        v_lshrrev_b32 v56, 3, v0
        v_lshlrev_b32 v56, 15, v56
        v_and_b32 v57, 7, v1
        v_lshl_add_u32 v56, v57, 4, v56
        s_lshl_b32 {T2}, s{S_P}, 7
        s_add_u32 {T2}, {T2}, {WS_X1}
        v_add_u32 v29, {T2}, v56
        v_add_u32 v30, {WS_X1S - WS_X1}, v29
        ''')
        steps = list(steps)
        gap = 8 // max(len(steps), 1)
        for m in range(8):
            for dl in range(4):
                r = 128 + (dl * 8 + m) * 4
                off = 2 * (1888 - 256 * m - 32 * dl)
                a(f'ds_read_b64 {vr(r, 2)}, v24 offset:{off}')
                a(f'ds_read_b64 {vr(r + 2, 2)}, v24 offset:{off + 8}')
                a(fill[:2]); fill = fill[2:]
            if steps and m % gap == gap - 1:
                self.wdma([steps.pop(0)])
        a(fill)
        self.wdma(steps)

    def hbuild(self, tok):
        a = self.a
        self.stamp('preS1')
        self.poll(self.s1_issue, [34, 38, 42, 46, 50], tok)
        self.stamp('S1')
        st = (40, 41, 44, 45)
        a(f'''
        v_add_f32_dpp v48, v48, v48 quad_perm:[1,0,3,2] row_mask:0xf bank_mask:0xf
        v_add_f32_dpp v49, v49, v49 quad_perm:[1,0,3,2] row_mask:0xf bank_mask:0xf
        s_mov_b32 vcc_lo, 0x33333333
        s_mov_b32 vcc_hi, 0x33333333
        v_add_f32_dpp v48, v48, v48 quad_perm:[2,3,0,1] row_mask:0xf bank_mask:0xf
        v_add_f32_dpp v49, v49, v49 quad_perm:[2,3,0,1] row_mask:0xf bank_mask:0xf
        v_bfe_u32 v51, v1, 2, 1
        v_cvt_pk_bf16_f32 v50, v48, v49
        v_cvt_f32_u32 v51, v51
        v_lshlrev_b32 v48, 16, v50
        v_and_b32 v49, 0xffff0000, v50
        v_add_f32 v48, v48, v51
        v_add_f32 v49, v49, v51
        v_cvt_pk_bf16_f32 v50, v48, v49
        v_cndmask_b32_dpp v4, v36, v32, vcc quad_perm:[2,3,0,1] row_mask:0xf bank_mask:0xf bound_ctrl:0
        v_cndmask_b32_dpp v5, v37, v33, vcc quad_perm:[2,3,0,1] row_mask:0xf bank_mask:0xf bound_ctrl:0
        s_not_b64 vcc, vcc
        v_cndmask_b32_dpp v6, v32, v36, vcc quad_perm:[2,3,0,1] row_mask:0xf bank_mask:0xf bound_ctrl:0
        v_cndmask_b32_dpp v7, v33, v37, vcc quad_perm:[2,3,0,1] row_mask:0xf bank_mask:0xf bound_ctrl:0
        ''')
        for k in range(2):
            a(f'v_readlane_b32 s{S_MOD + 2 * k + 1}, v50, {4 * k}')
        for i in range(4):
            a(f'v_and_b32 v{53 + 2 * i}, 0xffff0000, v{st[i]}')
            a(f'v_lshlrev_b32 v{52 + 2 * i}, 16, v{st[i]}')
            a(f'v_rcp_f32 v{53 + 2 * i}, v{53 + 2 * i}')
        for k in range(2):
            a(f's_lshl_b32 s{S_MOD + 2 * k}, s{S_MOD + 2 * k + 1}, 16')
            a(f's_and_b32 s{S_MOD + 2 * k + 1}, s{S_MOD + 2 * k + 1}, 0xffff0000')
        a(f'v_mov_b32 v48, s{S_MOD}\nv_mov_b32 v49, s{S_MOD + 1}')
        for i in range(4):
            x = 32 + 2 * i
            a(f'v_lshlrev_b32 v{x}, 16, v{4 + i}\nv_and_b32 v{x + 1}, 0xffff0000, v{4 + i}')
        for i in range(4):
            x = 32 + 2 * i
            a(f'v_pk_add_f32 {vr(x, 2)}, {vr(x, 2)}, {vr(52 + 2 * i, 2)} op_sel:[0,0] op_sel_hi:[1,0] neg_lo:[0,1] neg_hi:[0,1]')
        for i in range(4):
            x = 32 + 2 * i
            a(f'v_pk_mul_f32 {vr(x, 2)}, {vr(x, 2)}, {vr(52 + 2 * i, 2)} op_sel:[0,1] op_sel_hi:[1,1]')
        for i in range(4):
            x = 32 + 2 * i
            a(f'v_pk_fma_f32 {vr(x, 2)}, {vr(x, 2)}, {sp(S_MOD + 2)}, v[48:49]')
        for ch in range(2):
            a(f'v_cvt_pk_bf16_f32 v{8 + 2 * ch}, v{32 + ch}, v{34 + ch}')
            a(f'v_cvt_pk_bf16_f32 v{9 + 2 * ch}, v{36 + ch}, v{38 + ch}')
            a(f'ds_write_b64 v28, {vr(8 + 2 * ch, 2)} offset:{4608 * ch}')
        for k in range(2, 4):
            a(f'v_readlane_b32 s{S_MOD + 2 * k + 1}, v50, {4 * k}')
        a(f's_mov_b32 s{S_MOD + 9}, s{S_DSKV}')
        for k in (4, 2, 3):
            a(f's_lshl_b32 s{S_MOD + 2 * k}, s{S_MOD + 2 * k + 1}, 16')
            a(f's_and_b32 s{S_MOD + 2 * k + 1}, s{S_MOD + 2 * k + 1}, 0xffff0000')

    def conv_h0(self, ts, steps):
        a = self.a
        lo, hi = ts, 3 - ts
        toks = {}
        for dl in range(4):
            for mp in range(hi + 1):
                toks[dl, mp] = a(f'ds_read_b128 {vr(64 + (dl * 4 + mp) * 4, 4)}, v25 offset:{192 - 64 * dl + 512 * mp}')
        for dl in range(4):
            for mp in range(hi + 1, 4):
                a(f'ds_read_b128 {vr(64 + (dl * 4 + mp) * 4, 4)}, v25 offset:{192 - 64 * dl + 512 * mp}')
        first = {lo: True, hi: True}
        for dl in range(4):
            for mp in range(4):
                for jt, acc in ((lo, 16), (hi, 20)):
                    m = jt - mp
                    if m < 0:
                        continue
                    a.wait(toks[dl, mp])
                    c = '0' if first[jt] else vr(acc, 4)
                    first[jt] = False
                    a(f'v_mfma_f32_16x16x32_bf16 {vr(acc, 4)}, {vr(128 + (dl * 8 + m) * 4, 4)}, {vr(64 + (dl * 4 + mp) * 4, 4)}, {c}')
        self.wdma(steps)
        a(f'ds_write_b128 v26, v[16:19] offset:{1024 * lo}')
        a(f'ds_write_b128 v26, v[20:23] offset:{1024 * hi}')

    def conv_h1(self, ts, hooks):
        a = self.a
        lo, hi = 4 + ts, 7 - ts
        toks = {}

        def rd(dl):
            for mp in range(4, hi + 1):
                toks[dl, mp] = a(f'ds_read_b128 {vr(32 + ((dl & 1) * 4 + mp - 4) * 4, 4)}, v25 offset:{192 - 64 * dl + 512 * mp}')
        rd(0); rd(1)
        first = {lo: True, hi: True}
        for dl in range(4):
            for mp in range(hi + 1):
                for jt, acc in ((lo, 16), (hi, 20)):
                    m = jt - mp
                    if m < 0:
                        continue
                    if mp >= 4:
                        a.wait(toks[dl, mp])
                        b = 32 + ((dl & 1) * 4 + mp - 4) * 4
                    else:
                        b = 64 + (dl * 4 + mp) * 4
                    c = '0' if first[jt] else vr(acc, 4)
                    first[jt] = False
                    a(f'v_mfma_f32_16x16x32_bf16 {vr(acc, 4)}, {vr(128 + (dl * 8 + m) * 4, 4)}, {vr(b, 4)}, {c}')
            if dl + 2 < 4:
                rd(dl + 2)
            hooks(dl)
        a(f'ds_write_b128 v26, v[16:19] offset:{1024 * (lo - 4)}')
        a(f'ds_write_b128 v26, v[20:23] offset:{1024 * (hi - 4)}')

    def conv_epi(self):
        a = self.a
        toks = [a(f'ds_read_b128 {vr(32 + 4 * k, 4)}, v27 offset:{4096 * k}') for k in range(4)]
        for ch in range(2):
            for j in range(2):
                a(f'v_lshlrev_b32 v{48 + 4 * ch + 2 * j}, 16, v{8 + 2 * ch + j}')
                a(f'v_and_b32 v{49 + 4 * ch + 2 * j}, 0xffff0000, v{8 + 2 * ch + j}')
        for i in range(4):
            a(f'v_lshlrev_b32 v{56 + i}, 16, v{4 + i}\nv_and_b32 v{60 + i}, 0xffff0000, v{4 + i}')
        for ch in range(2):
            a.wait(toks[2 * ch + 1])
            sel = f'op_sel:[0,{ch},0] op_sel_hi:[1,{ch},1]'
            for j in range(2):
                y = 32 + 8 * ch + 2 * j
                a(f'v_pk_add_f32 {vr(y, 2)}, {vr(y, 2)}, {vr(y + 4, 2)}')
            for j in range(2):
                y = 32 + 8 * ch + 2 * j
                a(f'v_pk_fma_f32 {vr(y, 2)}, {vr(48 + 4 * ch + 2 * j, 2)}, {sp(S_MOD + 8)}, {vr(y, 2)} {sel}')
            for j in range(2):
                y = 32 + 8 * ch + 2 * j
                a(f'v_pk_fma_f32 {vr(y, 2)}, {vr(y, 2)}, {sp(S_MOD + 4)}, {vr(56 + 4 * ch + 2 * j, 2)} {sel}')
            for j in range(2):
                y = 32 + 8 * ch + 2 * j
                a(f'v_pk_mul_f32 {vr(y + 4, 2)}, {vr(y, 2)}, {sp(S_MOD + 6)} op_sel:[0,{ch}] op_sel_hi:[1,{ch}]')
        for i in range(4):
            a(f'v_cvt_pk_bf16_f32 v{8 + i}, v{36 + i}, v{44 + i}')
        a(f'global_store_dwordx4 v30, v[8:11], {sp(S_WS)} sc1')
        for i in range(4):
            a(f'v_cvt_pk_bf16_f32 v{4 + i}, v{32 + i}, v{40 + i}')
        return a(f'global_store_dwordx4 v29, v[4:7], {sp(S_WS)} sc1')

    def flag(self, va, vd):
        self.a(f'''
        v_mov_b32 v{va}, {T0}
        v_mov_b32 v{vd}, s{S_TAG}
        v_mov_b32 v{vd + 1}, s{S_TAG + 1}
        s_mov_b64 exec, 1
        global_store_dwordx2 v{va}, {vr(vd, 2)}, {sp(S_WS)} sc1
        s_mov_b64 exec, -1
        ''')

    def flag2(self, va, vd):
        self.a(f'''
        s_lshl_b32 {T0}, s{S_V}, 12
        s_lshl_b32 {T1}, s{S_P}, 4
        s_add_u32 {T0}, {T0}, {T1}
        s_add_u32 {T0}, {T0}, {WS_F2}
        ''')
        self.flag(va, vd)

    def sv_issue(self):
        a = self.a
        for k in range(8):
            t = a(f'global_load_dwordx4 {vr(128 + 4 * k, 4)}, v{12 if k < 4 else 31}, {sp(S_WS)} offset:{512 * (k & 3)} sc1')
        return t

    def sv_build(self, tok):
        a = self.a
        self.poll(self.sv_issue, [130 + 4 * k for k in range(8)], tok)
        for b in (128, 144):
            a(f'v_pk_add_f32 {vr(b, 2)}, {vr(b, 2)}, {vr(b + 4, 2)}')
            a(f'v_pk_add_f32 {vr(b + 8, 2)}, {vr(b + 8, 2)}, {vr(b + 12, 2)}')
            a(f'v_pk_add_f32 {vr(b, 2)}, {vr(b, 2)}, {vr(b + 8, 2)}')
            a(f'v_cvt_pk_bf16_f32 v{b}, v{b}, v{b + 1}')
        a(f'''
        v_lshlrev_b32 v146, 16, v144
        v_and_b32 v147, 0xffff0000, v144
        v_add_f32 v146, 1.0, v146
        v_add_f32 v147, 1.0, v147
        v_cvt_pk_bf16_f32 v144, v146, v147
        v_lshlrev_b32 v146, 2, v0
        v_add_u32 v146, {L_SV}, v146
        ds_write_b32 v146, v144
        ds_write_b32 v146, v128 offset:1024
        ''')

    def cf_addr(self):
        self.a(f'''
        v_lshrrev_b32 v16, 4, v1
        v_bfe_u32 v17, v1, 2, 2
        v_and_b32 v18, 1, v16
        v_lshrrev_b32 v19, 1, v17
        v_lshl_add_u32 v18, v18, 1, v19
        v_xor_b32 v18, s{S_U}, v18
        v_lshlrev_b32 v19, 11, v16
        v_lshl_add_u32 v19, v17, 7, v19
        v_lshl_add_u32 v19, v18, 5, v19
        v_and_b32 v18, 1, v1
        v_bfe_u32 v17, v1, 1, 1
        v_lshl_or_b32 v17, v18, 1, v17
        v_lshl_add_u32 v12, v17, 3, v19
        v_xor_b32 v13, 64, v12
        v_add_u32 v13, 1024, v13
        v_lshlrev_b32 v18, 10, v18
        v_lshl_add_u32 v18, v16, 4, v18
        v_add_u32 v14, {L_SV}, v18
        ''')

    def cfrags(self, hook):
        a = self.a
        toks = {}

        def rd(k):
            b = 72 + 12 * (k % 4)
            if k == 8:
                a('v_add_u32 v12, 0x10000, v12\nv_add_u32 v13, 0x10000, v13')
            a(f'ds_read_b128 {vr(b, 4)}, v14 offset:{64 * k}')
            for mat in range(2):
                for hf in range(2):
                    toks[k, mat] = a(f'ds_read_b64_tr_b16 {vr(b + 4 + 4 * mat + 2 * hf, 2)}, v{12 + mat} offset:{8192 * (k & 7) + 512 * hf}')
        rd(0); rd(1); rd(2)
        for k in range(16):
            b = 72 + 12 * (k % 4)
            a.wait(toks[k, 1])
            if k + 3 < 16:
                rd(k + 3)
            for mat in range(2):
                acc = vr(16 + 4 * mat, 4)
                a(f'v_mfma_f32_16x16x32_bf16 {acc}, {vr(b, 4)}, {vr(b + 4 + 4 * mat, 4)}, {"0" if k == 0 else acc}')
        hook()
        a(f'''
        s_mov_b32 vcc_lo, 0xffff0000
        s_mov_b32 vcc_hi, 0xffff0000
        s_lshl_b32 {T0}, s{S_U}, 10
        s_add_u32 {T0}, {T0}, {L_CF}
        v_lshl_add_u32 v15, v1, 4, {T0}
        s_mov_b32 {T0}, 0x05040100
        s_mov_b32 {T1}, 0x07060302
        s_mov_b32 {T2}, 0x07060100
        v_cndmask_b32 v16, v16, v20, vcc
        v_cndmask_b32 v17, v17, v21, vcc
        v_cvt_pk_bf16_f32 v24, v16, v17
        v_lshlrev_b32 v18, 16, v24
        v_and_b32 v19, 0xffff0000, v24
        v_sub_f32 v16, v16, v18
        v_sub_f32 v17, v17, v19
        v_cvt_pk_bf16_f32 v25, v16, v17
        v_lshlrev_b32 v18, 16, v25
        v_and_b32 v19, 0xffff0000, v25
        v_sub_f32 v16, v16, v18
        v_sub_f32 v17, v17, v19
        v_cvt_pk_bf16_f32 v26, v16, v17
        v_perm_b32 v20, v25, v24, {T0}
        v_perm_b32 v21, v24, v26, {T2}
        v_perm_b32 v22, v26, v25, {T1}
        v_mov_b32 v23, 0
        s_mov_b32 exec_lo, 0
        v_mov_b32 v20, 0
        v_mov_b32 v21, 0
        v_mov_b32 v22, 0
        s_mov_b32 exec_lo, -1
        ds_write_b128 v15, v[20:23]
        ''')

    def f2_addr(self):
        self.a(f'''
        s_lshr_b32 {T0}, s{S_RG1}, 3
        s_lshl_b32 {T0}, {T0}, 12
        s_add_u32 {T0}, {T0}, {WS_F2}
        v_lshl_add_u32 v70, v1, 4, {T0}
        ''')

    def f2_issue(self):
        for k in range(4):
            t = self.a(f'global_load_dwordx2 {vr(60 + 2 * k, 2)}, v70, {sp(S_WS)} offset:{1024 * k} sc1')
        return t

    def g1_addr(self):
        self.a(f'''
        v_lshrrev_b32 v8, 5, v1
        v_bfe_u32 v9, v1, 4, 1
        v_bfe_u32 v10, v1, 2, 2
        v_xor_b32 v11, v8, v9
        v_lshrrev_b32 v2, 1, v10
        v_lshl_add_u32 v11, v11, 1, v2
        v_lshlrev_b32 v2, 11, v8
        v_lshl_add_u32 v2, v9, 10, v2
        v_lshl_add_u32 v2, v10, 7, v2
        v_lshl_add_u32 v2, v11, 5, v2
        v_and_b32 v9, 1, v1
        v_bfe_u32 v10, v1, 1, 1
        v_lshl_or_b32 v7, v9, 1, v10
        v_lshl_add_u32 v2, v7, 3, v2
        v_xor_b32 v3, 32, v2
        v_xor_b32 v4, 64, v2
        v_xor_b32 v5, 0x60, v2
        v_and_b32 v9, 31, v1
        v_lshlrev_b32 v9, 2, v9
        v_lshl_add_u32 v9, v8, 9, v9
        s_lshl_b32 {T0}, s{S_RG1}, 15
        s_add_u32 {T1}, {T0}, {WS_X1S + 4096}
        v_add_u32 v6, {T1}, v9
        s_lshr_b32 {T1}, s{S_NB1}, 2
        s_lshl_b32 {T2}, {T1}, 12
        s_add_u32 {T0}, {T0}, {T2}
        s_add_u32 {T2}, {T0}, {WS_X1}
        v_lshl_add_u32 v68, v1, 4, {T2}
        s_lshr_b32 {T0}, {T0}, 3
        s_add_u32 {T0}, {T0}, {WS_ST2}
        v_lshrrev_b32 v8, 4, v1
        v_and_b32 v9, 7, v1
        v_lshl_add_u32 v8, v8, 3, v9
        v_lshl_add_u32 v69, v8, 4, {T0}
        ''')

    def xload(self, ks, j):
        if ks and ks % 8 == 0 and j == 0:
            self.a('v_add_u32 v6, 8192, v6')
        return self.a(f'global_load_dword v{8 + 4 * (ks % 8) + j}, v6, {sp(S_WS)} offset:{1024 * (ks % 8) + 128 * j - 4096} sc1')

    def g1_start(self):
        a = self.a
        tj = []

        def jobload():
            for k in range(4):
                tj.append(a(f'global_load_dwordx4 {vr(40 + 4 * k, 4)}, v68, {sp(S_WS)} offset:{1024 * k} sc1'))
        self.cond(JOB, jobload)
        self.xt = {}
        for ks in range(7):
            for j in range(4):
                self.xt[ks] = self.xload(ks, j)

        def job():
            a(f'v_mov_b32 v66, s{S_TAG}\nv_mov_b32 v67, s{S_TAG + 1}')
            for k in range(4):
                a.wait(tj[k])
                for i in range(4):
                    x = 40 + 4 * k + i
                    a(f'v_lshlrev_b32 v64, 16, v{x}\nv_and_b32 v65, 0xffff0000, v{x}')
                    if k == 0:
                        a(f'v_add_f32 v{56 + i}, v64, v65\nv_mul_f32 v{60 + i}, v64, v64')
                    else:
                        a(f'v_add_f32 v{56 + i}, v64, v{56 + i}\nv_fmac_f32 v{60 + i}, v64, v64\nv_add_f32 v{56 + i}, v65, v{56 + i}')
                    a(f'v_fmac_f32 v{60 + i}, v65, v65')
            for b in (56, 60):
                a(f'v_permlane32_swap_b32 v{b}, v{b + 2}\nv_permlane32_swap_b32 v{b + 1}, v{b + 3}')
            for b in (56, 60):
                a(f'v_add_f32 v{b}, v{b}, v{b + 2}\nv_add_f32 v{b + 1}, v{b + 1}, v{b + 3}')
            for b in (56, 60):
                a(f'v_permlane16_swap_b32 v{b}, v{b + 1}')
            a(f'''
            v_add_f32 v64, v56, v57
            v_add_f32 v65, v60, v61
            v_add_f32_dpp v64, v64, v64 row_ror:8 row_mask:0xf bank_mask:0xf
            v_add_f32_dpp v65, v65, v65 row_ror:8 row_mask:0xf bank_mask:0xf
            s_mov_b32 exec_lo, 0x00ff00ff
            s_mov_b32 exec_hi, 0x00ff00ff
            global_store_dwordx4 v69, v[64:67], {sp(S_WS)} sc1
            s_mov_b64 exec, -1
            ''')
        self.cond(JOB, job)

    def st2_issue(self):
        for k in range(4):
            t = self.a(f'global_load_dwordx4 {vr(8 + 4 * k, 4)}, v6, {sp(S_WS)} offset:{512 * k} sc1')
        return t

    def g1_main(self, nt):
        a = self.a
        xt = dict(self.xt)
        wt = {}

        def wread(ks, s):
            if ks == 16:
                a(f'v_add_u32 v{2 + s}, 0x10000, v{2 + s}')
            b = 40 + 16 * (ks & 1) + 4 * s
            a(f'ds_read_b64_tr_b16 {vr(b, 2)}, v{2 + s} offset:{4096 * (ks & 15)}')
            wt[ks, s] = a(f'ds_read_b64_tr_b16 {vr(b + 2, 2)}, v{2 + s} offset:{4096 * (ks & 15) + 512}')
        for s in range(nt):
            wread(0, s)
        spread = [[0], [1], [2], [3]] if nt == 4 else [[0, 1], [2], [3]]
        fill = L(f'''
        v_and_b32 v6, 3, v1
        v_bfe_u32 v7, v1, 2, 3
        v_lshl_add_u32 v6, v6, 3, v7
        v_lshrrev_b32 v7, 5, v1
        v_lshl_add_u32 v6, v7, 7, v6
        s_lshl_b32 {T0}, s{S_RG1}, 12
        s_add_u32 {T0}, {T0}, {WS_ST2}
        v_lshl_add_u32 v6, v6, 4, {T0}
        v_lshlrev_b32 v7, 4, v1
        v_add_u32 v7, {L_CF}, v7
        ''')
        ts2 = None
        for ks in range(32):
            for s in range(nt):
                a.wait(*([xt[ks]] if s == 0 else []), wt[ks, s])
                acc = vr(72 + 16 * s, 16)
                a(f'v_mfma_f32_32x32x16_bf16 {acc}, {vr(40 + 16 * (ks & 1) + 4 * s, 4)}, {vr(8 + 4 * (ks % 8), 4)}, {"0" if ks == 0 else acc}')
                if ks + 1 < 32:
                    wread(ks + 1, s)
                else:
                    wt[32, s] = a(f'ds_read_b128 {vr(40 + 4 * s, 4)}, v7 offset:{1024 * s}')
                if ks + 7 < 32:
                    for j in spread[s]:
                        xt[ks + 7] = self.xload(ks + 7, j)
                elif fill:
                    a(fill[:2]); fill = fill[2:]
                if ks == 28 and s == 0:
                    ts2 = self.st2_issue()
        self.stamp('g1 loop')
        self.poll(self.st2_issue, [10, 14, 18, 22], ts2)
        self.stamp('st2')
        a(f'''
        v_add_f32 v8, v8, v12
        v_add_f32 v9, v9, v13
        v_add_f32 v16, v16, v20
        v_add_f32 v17, v17, v21
        v_add_f32 v8, v8, v16
        v_add_f32 v9, v9, v17
        s_mov_b32 {T0}, {fhex(1 / 512)}
        v_mov_b32 v10, v8
        v_mov_b32 v11, v9
        v_mov_b32 v15, 0
        v_permlane32_swap_b32 v8, v10
        v_permlane32_swap_b32 v9, v11
        v_add_f32 v8, v8, v10
        v_add_f32 v9, v9, v11
        v_mul_f32 v8, {T0}, v8
        v_mul_f32 v9, {T0}, v9
        ''')
        self.meanstd(8, 9, 1, 10)
        a(f'''
        v_cvt_pk_bf16_f32 v12, -v8, -v8
        v_cvt_pk_bf16_f32 v13, -v8, v9
        v_cvt_pk_bf16_f32 v14, v9, v9
        v_and_b32 v16, 0xffff0000, v13
        v_rcp_f32 v16, v16
        ''')
        for s in range(nt):
            a.wait(wt[32, s])
            acc = vr(72 + 16 * s, 16)
            a(f'v_mfma_f32_32x32x16_bf16 {acc}, {vr(40 + 4 * s, 4)}, v[12:15], {acc}')
        a(f'''
        v_mul_f32 v16, v16, v16
        s_mul_i32 {T0}, s{S_RG1}, 114688
        s_lshr_b32 {T1}, s{S_NB1}, 1
        s_mul_i32 {T1}, {T1}, 7168
        s_add_u32 {T0}, {T0}, {T1}
        s_add_u32 {T0}, {T0}, {WS_HH}
        v_lshl_add_u32 v18, v1, 4, {T0}
        s_lshl_b32 {T1}, s{S_ODD}, 12
        v_add_u32 v17, {T1}, v18
        ''')
        for s in range(nt):
            b = 72 + 16 * s
            for j in range(8):
                a(f'v_mul_f32 v{b + j}, v{b + j}, v{b + 8 + j}')
            for j in range(8):
                a(f'v_mul_f32 v{b + j}, v16, v{b + j}')
            for j in range(4):
                a(f'v_cvt_pk_bf16_f32 v{b + 8 + j}, v{b + 2 * j}, v{b + 2 * j + 1}')
            a(f'global_store_dwordx4 v{17 if s < 3 else 18}, {vr(b + 8, 4)}, {sp(S_WS)} offset:{1024 * s} sc1')

    def flag3(self):
        self.a(f'''
        s_lshl_b32 {T0}, s{S_RG1}, 9
        s_lshl_b32 {T1}, s{S_NB1}, 4
        s_add_u32 {T0}, {T0}, {T1}
        s_add_u32 {T0}, {T0}, {WS_F3}
        ''')
        self.flag(67, 68)

    def wd_load(self, va):
        a = self.a
        a(f'''
        v_lshrrev_b32 v{va}, 5, v1
        v_lshlrev_b32 v{va}, 13, v{va}
        v_and_b32 v{va + 1}, 31, v1
        v_lshl_add_u32 v{va}, v{va + 1}, 2, v{va}
        s_mul_i32 {T0}, s{S_V}, {224 * 1024}
        s_lshl_b32 {T1}, s{S_DB}, 7
        s_add_u32 {T0}, {T0}, {T1}
        s_add_u32 {T0}, {T0}, 4096
        v_add_u32 v{va}, {T0}, v{va}
        s_mov_b32 s{S_T + 8}, 0x05040100
        s_mov_b32 s{S_T + 9}, 0x07060302
        ''')
        toks = {}

        def ld(s):
            for j in range(8):
                toks[s] = a(f'global_load_dword v{144 + 8 * s + j}, v{va}, {sp(S_WD)} offset:{1024 * j - 4096}')
            a(f'v_add_u32 v{va}, 16384, v{va}')

        def pm(s):
            a.wait(toks[s])
            src, dst = 144 + 8 * s, 136 + 8 * s
            for jj in range(4):
                a(f'v_perm_b32 v{dst + jj}, v{src + 2 * jj + 1}, v{src + 2 * jj}, s{S_T + 8}')
                a(f'v_perm_b32 v{dst + 4 + jj}, v{src + 2 * jj + 1}, v{src + 2 * jj}, s{S_T + 9}')
        dep = self.o.get('wd_depth', 4)
        for s in range(dep):
            ld(s)
        for s in range(14):
            pm(s)
            if s + dep < 14:
                ld(s + dep)

    def gb_issue(self):
        for k in range(4):
            t = self.a(f'global_load_dwordx4 {vr(8 + 4 * k, 4)}, v24, {sp(S_WS)} offset:{512 * k} sc1')
        return t

    def gb_build(self):
        a = self.a
        a(f'''
        s_add_u32 {T0}, s{S_DB}, 40
        s_lshl_b32 {T0}, {T0}, 11
        s_add_u32 {T0}, {T0}, {WS_MODP}
        v_and_b32 v25, 31, v1
        v_lshl_add_u32 v24, v25, 4, {T0}
        ''')
        t = self.gb_issue()
        self.poll(self.gb_issue, [10, 14, 18, 22], t)
        a(f'''
        v_add_f32 v8, v8, v12
        v_add_f32 v9, v9, v13
        v_add_f32 v16, v16, v20
        v_add_f32 v17, v17, v21
        v_add_f32 v8, v8, v16
        v_add_f32 v9, v9, v17
        v_cvt_pk_bf16_f32 v10, v8, v9
        v_lshlrev_b32 v8, 16, v10
        v_and_b32 v9, 0xffff0000, v10
        v_lshlrev_b32 v25, 3, v25
        v_add_u32 v25, {L_GB}, v25
        ds_write_b64 v25, v[8:9]
        ''')

    def g2_addr(self):
        self.a(f'''
        s_lshl_b32 {T0}, s{S_RG2}, 9
        s_lshl_b32 {T1}, s{S_V}, 6
        s_add_u32 {T0}, {T0}, {T1}
        s_add_u32 {T0}, {T0}, {WS_F3}
        v_and_b32 v2, 3, v1
        v_lshl_add_u32 v2, v2, 4, {T0}
        s_mul_i32 {T0}, s{S_RG2}, 114688
        s_mul_i32 {T1}, s{S_V}, 14336
        s_add_u32 {T0}, {T0}, {T1}
        s_add_u32 {T0}, {T0}, {WS_HH + 4096}
        v_lshl_add_u32 v3, v1, 4, {T0}
        v_add_u32 v4, 8192, v3
        s_lshl_b32 {T0}, s{S_RG2}, 15
        s_lshl_b32 {T1}, s{S_DB}, 12
        s_add_u32 {T0}, {T0}, {T1}
        s_add_u32 {T0}, {T0}, {WS_X1}
        v_and_b32 v5, 255, v0
        v_lshl_add_u32 v5, v5, 4, {T0}
        v_lshrrev_b32 v6, 7, v0
        v_bfe_u32 v7, v0, 4, 1
        v_lshl_add_u32 v6, v6, 1, v7
        v_bfe_u32 v7, v0, 5, 2
        v_lshl_add_u32 v6, v6, 2, v7
        v_lshlrev_b32 v7, 3, v0
        ''')

    def f3_issue(self):
        return self.a(f'global_load_dwordx2 v[70:71], v2, {sp(S_WS)} sc1')

    def g2_loads(self, half, tok):
        a = self.a
        self.poll(self.f3_issue, [70], tok)
        self.stamp(f'f3 h{half}')
        self.ht = []
        for s in range(14):
            self.ht.append(a(f'global_load_dwordx4 {vr(8 + 4 * s, 4)}, v{3 + s // 8}, {sp(S_WS)} offset:{1024 * (s % 8) - 4096} sc1'))
        self.tr = []
        self.cond(G0, lambda: self.tr.append(a(f'global_load_dwordx4 v[64:67], v5, {sp(S_WS)} sc1')))
        if half == 0:
            a(f'''
            v_add_u32 v2, {32 * 512}, v2
            v_add_u32 v3, {32 * 114688}, v3
            v_add_u32 v4, {32 * 114688}, v4
            v_add_u32 v5, {32 * 32768}, v5
            ''')

    def g2_mma(self, half):
        a = self.a
        for s in range(14):
            a.wait(self.ht[s])
            for e in range(2):
                acc = vr(72 + 16 * e, 16)
                a(f'v_mfma_f32_32x32x16_bf16 {acc}, {vr(8 + 4 * s, 4)}, {vr(136 + 8 * s + 4 * e, 4)}, {"0" if s == 0 else acc}')

        def stash():
            a(f'''
            v_bfe_u32 v68, v0, 3, 5
            v_mul_u32_u24 v68, 144, v68
            v_and_b32 v69, 7, v1
            v_lshl_add_u32 v68, v69, 4, v68
            v_add_u32 v68, {L_H + 4608 * half}, v68
            ''')
            a.wait(*self.tr)
            a('ds_write_b128 v68, v[64:67]')
        self.cond(G0, stash)
        a(f's_lshl_b32 {T0}, s{S_V}, 13\ns_add_u32 m0, {T0}, {half << 16}')
        self.stamp(f'mma{half}')

    def g2_partials(self):
        for r in range(32):
            self.a(f'ds_write_addtid_b32 v{72 + r} offset:{256 * r}')

    def g2_final(self, half):
        a = self.a
        if half:
            a('v_add_u32 v7, 0x10000, v7')
        toks = []
        for k in range(8):
            a(f'ds_read_b64 {vr(104 + 4 * k, 2)}, v7 offset:{8192 * k}')
            toks.append(a(f'ds_read_b64 {vr(106 + 4 * k, 2)}, v7 offset:{8192 * k + 4096}'))
        a(f'''
        v_and_b32 v248, 15, v1
        v_mul_u32_u24 v249, 288, v248
        v_lshl_add_u32 v249, v6, 2, v249
        v_add_u32 v249, {L_H + 4608 * half}, v249
        ds_read2_b32 v[68:69], v249 offset0:0 offset1:36
        v_lshlrev_b32 v249, 4, v248
        v_add_u32 v249, {L_GB}, v249
        ''')
        tg = a('ds_read_b128 v[252:255], v249')
        a(f'''
        s_lshl_b32 {T0}, s{S_RG2}, 15
        s_lshl_b32 {T1}, s{S_DB}, 7
        s_add_u32 {T0}, {T0}, {T1}
        s_add_u32 {T0}, {T0}, {half << 20}
        v_lshlrev_b32 v250, 10, v6
        v_lshl_add_u32 v250, v248, 3, v250
        v_add_u32 v250, {T0}, v250
        ''')
        for k in range(1, 8):
            a.wait(toks[k])
            for j in range(4):
                a(f'v_add_f32 v{104 + j}, v{104 + j}, v{104 + 4 * k + j}')
        a.wait(tg)
        a(f'''
        v_lshlrev_b32 v108, 16, v68
        v_and_b32 v109, 0xffff0000, v68
        v_lshlrev_b32 v110, 16, v69
        v_and_b32 v111, 0xffff0000, v69
        v_fmac_f32 v108, v252, v104
        v_fmac_f32 v109, v253, v106
        v_fmac_f32 v110, v254, v105
        v_fmac_f32 v111, v255, v107
        v_cvt_pk_bf16_f32 v108, v108, v109
        v_cvt_pk_bf16_f32 v109, v110, v111
        global_store_dwordx2 v250, v[108:109], {sp(S_OUT)} {self.o.get('outsc', '')}
        ''')

    def build(self):
        a = self.a
        self.front()
        self.chains()
        self.kprod()
        self.expand()
        st = {}

        def g0_a():
            t = self.s1_issue()
            self.afrags([])
            self.hbuild(t)

        def g1_a():
            self.afrags(self.take_w(3, 5))
            st['s1'] = self.s1_issue()
        self.cond(G0, g0_a, g1_a)
        self.barrier('B5')
        w4 = self.take_w(4, 0)
        self.cond(TS0, lambda: self.conv_h0(0, w4), lambda: self.conv_h0(1, w4))
        self.barrier('B6')

        def g0_b():
            st['x1'] = self.conv_epi()
            a(f'''
            v_lshrrev_b32 v12, 5, v0
            v_lshlrev_b32 v12, 11, v12
            v_and_b32 v31, 31, v1
            v_lshl_add_u32 v12, v31, 4, v12
            v_add_u32 v31, {WS_MODP + 32 * 2048}, v12
            v_add_u32 v12, {WS_MODP + 24 * 2048}, v12
            ''')

        def g1_b():
            if w4:
                a(f's_waitcnt vmcnt({2 * len(w4)})')
            self.hbuild(None if w4 else st['s1'])
            self.wdma(self.take_w(5, 0))
        self.cond(G0, g0_b, g1_b)
        self.stamp('preB6b')
        self.barrier()
        wl = [self.take_w(6 + dl, 0) for dl in range(4)]
        wl[3] += self.wsteps
        sv = []

        def hooks(dl):
            def g0h():
                if dl == self.o.get('f2pos', 1):
                    a.wait(st['x1'])
                    self.flag2(13, 14)
                    self.stamp('flag2')
                    sv.append(self.sv_issue())
            self.cond(G0, g0h, lambda: self.wdma(wl[dl]))
        self.cond(TS0, lambda: self.conv_h1(0, hooks), lambda: self.conv_h1(1, hooks))
        self.barrier('B7')

        def g0_c():
            self.f2_addr()
            st['f2'] = self.f2_issue()
            self.sv_build(sv)
            self.g1_addr()
            self.barrier('B8')

        def g1_c():
            tx1 = self.conv_epi()
            self.cf_addr()
            a('s_waitcnt vmcnt(2)')
            self.barrier('B8')

            def fl():
                a('s_waitcnt vmcnt(0)')
                self.flag2(27, 28)
                self.stamp('flag2')
            self.cfrags(fl)
            self.stamp('preB9')
            self.barrier('B9')
            self.g1_addr()
            if self.o['wd_early']:
                self.wd_load(8)
            self.f2_addr()
            st['f2b'] = self.f2_issue()
        self.cond(G0, g0_c, g1_c)
        self.poll(self.f2_issue, [60, 62, 64, 66], [st['f2'], st['f2b']])
        self.stamp('f2')
        self.cond(G0, lambda: a('s_setprio 2'), lambda: a('s_setprio 1'))
        self.g1_start()

        def b9():
            self.stamp('preB9')
            self.barrier('B9')
        self.cond(G0, b9)
        a('s_waitcnt lgkmcnt(0)')
        self.cond(f's_cmp_eq_u32 s{S_G}, s{S_ODD}', lambda: self.g1_main(4), lambda: self.g1_main(3))
        self.stamp('g1 end')
        self.g2_addr()

        def g0_d():
            a('s_setprio 0')
            a('s_waitcnt vmcnt(0)')
            self.flag3()
            self.stamp('flag3')
            self.cond(f's_cmp_eq_u32 s{S_V}, 0', self.gb_build)
            self.wd_load(8)
            self.stamp('wd')
            st['f3'] = self.f3_issue()

        def g1_d():
            self.f3_issue()
            a('s_waitcnt vmcnt(0)')
            self.flag3()
            self.stamp('flag3')
            if not self.o['wd_early']:
                self.wd_load(8)
            self.stamp('wd')
        self.cond(G0, g0_d, g1_d)
        self.g2_loads(0, st['f3'])
        self.g2_mma(0)
        self.barrier('Bx')
        t = self.f3_issue()
        self.g2_partials()
        self.g2_loads(1, t)
        self.barrier('By')
        self.g2_final(0)
        self.stamp('fin0')
        self.g2_mma(1)
        self.g2_partials()
        self.barrier('Bz')
        self.g2_final(1)

        def epoch():
            a(f's_mov_b32 {T0}, 0')
            self.flag(67, 68)
        a(f's_or_b32 {T0}, s2, s{S_V}')
        self.cond(f's_cmp_eq_u32 {T0}, 0', epoch)
        if self.stamps and self.o.get('diag_hold'):
            self.stamp('end')
            if 'diag_wg' in self.o:
                a(f"s_cmp_lg_u32 s2, {self.o['diag_wg']}\ns_cbranch_scc1 L_exit")
            a(f'''
            s_waitcnt lgkmcnt(0)
            L_hold:
            s_memrealtime {sp(S_T)}
            s_waitcnt lgkmcnt(0)
            s_sub_u32 {T0}, {T0}, s{S_STAMP}
            s_cmp_lt_u32 {T0}, 6000
            s_cbranch_scc1 L_hold
            ''')
        elif self.stamps and self.o.get('dbgout'):
            self.stamp('end')
            a(f's_load_dwordx2 {sp(S_T)}, s[0:1], 128\nv_mov_b32 v2, 0\ns_waitcnt lgkmcnt(0)\ns_mov_b64 exec, 1')
            a(f's_not_b32 {T2}, s{S_STAMP}\nv_mov_b32 v7, {T2}\nglobal_atomic_umax v2, v7, {sp(S_T)}')
            for k in range(len(self.stamps)):
                a(f'v_mov_b32 v{8 + k}, s{S_STAMP + 2 * k}')
                a(f'global_atomic_umax v2, v{8 + k}, {sp(S_T)} offset:{4 * k + 4}')
        elif self.stamps:
            self.stamp('end')
            a(f'''
            s_lshl_b32 {T0}, s2, 3
            s_add_u32 {T0}, {T0}, s{S_V}
            s_lshl_b32 {T0}, {T0}, 7
            s_add_u32 {T0}, {T0}, {WS_DBG}
            v_mov_b32 v2, {T0}
            s_waitcnt lgkmcnt(0)
            s_mov_b64 exec, 1
            ''')
            for k in range(len(self.stamps)):
                a(f'v_mov_b32 v{8 + k}, s{S_STAMP + 2 * k}')
                a(f'global_store_dword v2, v{8 + k}, {sp(S_WS)} offset:{4 * k}')
        a('L_exit:\ns_endpgm')
        nops = a.fix_hazards()
        errs = a.check_waits()
        assert len(a.barrier_counts) == 2, a.barrier_counts
        return nops, errs

    def source(self):
        ref = open(f'cdna_kernels/{NAME}.s.ref').read().split('\n')
        head = [l for l in ref if l.startswith(';') and 'offset' in l or l.startswith('; Kernarg')]
        k = NAME + '_kernel'
        return '\n'.join(head) + f'''
; @launch grid=(256,1,1) block=(512,1,1) lds={LDS_BYTES}
.amdgcn_target "amdgcn-amd-amdhsa--gfx950"
.text
.globl {k}
.p2align 8
.type {k},@function
{k}:
''' + self.a.text() + f'''.section .rodata,"a"
.p2align 6
.amdhsa_kernel {k}
  .amdhsa_next_free_vgpr 256
  .amdhsa_next_free_sgpr 102
  .amdhsa_accum_offset 256
  .amdhsa_group_segment_fixed_size 0
  .amdhsa_kernarg_size 144
  .amdhsa_user_sgpr_count 2
  .amdhsa_user_sgpr_kernarg_segment_ptr 1
  .amdhsa_system_sgpr_workgroup_id_x 1
  .amdhsa_float_denorm_mode_32 3
.end_amdhsa_kernel
'''


def make(path, **kw):
    g = Gen(**kw)
    nops, errs = g.build()
    open(path, 'w').write(g.source())
    return g, nops, errs


if __name__ == '__main__':
    import json
    out = sys.argv[1] if len(sys.argv) > 1 else f'cdna_kernels/{NAME}.s'
    opt = json.loads(sys.argv[2]) if len(sys.argv) > 2 else {}
    g, nops, errs = make(out, opt=opt, stamps=opt.get('stamps'))
    print('instructions', len(g.a.ins), 'nops inserted', nops, 'barrier counts', g.a.barrier_counts)
    for e in errs:
        print('WAIT:', e)
```

```python
import struct
import sys
from asmlib import Asm

NAME = 'adaLN_cond__ssm_conv_s4__glu_gated_bilinear__prompt'

WS_ST1 = 0x10000
WS_MODP = 0x20000
WS_F2 = 0x48000
WS_F3 = 0x1240000
WS_FW = 0x40000
WS_FX = 0x50000
WS_CF = 0x60000
WS_ST2 = 0x80000
WS_DBG = 0xC0000
WS_XT = 0x100000
WS_X1 = 0x500000
WS_X1S = 0x700000
WS_HH = 0x900000
WS_WDP = 0x1000000

RS = 544
L_W = 0
NP = 22
L_P = 0
L_Q = 2 * NP * RS
L_CP = 0
L_H = 131072
L_PART = L_H + 9216
KTS = 10368
L_KT = L_PART
L_WM = 65536
L_SV = L_PART + 16384
L_S2 = L_SV + 2048
L_CNT = L_S2 + 3072
L_SILU = L_S2 + 4096
L_SP = L_SILU + 256
L_GB = L_SP + 512
LDS_BYTES = 163840
assert L_GB + 256 == LDS_BYTES

S_X, S_ARE, S_AIM, S_BRE, S_BIM, S_CRE, S_CIM, S_LDT, S_DSK = 4, 6, 8, 10, 12, 14, 16, 18, 20
S_WG, S_WU, S_WD, S_C, S_WM, S_OUT, S_DBG, S_WS = 24, 26, 28, 30, 32, 34, 36, 38
S_V = 3
S_P, S_XCD, S_IDX, S_G = 40, 41, 42, 43
S_TAG = 44
S_LDTV, S_DSKV = 46, 47
S_T = 48
S_SPIN = 58
S_U = 59
S_MB1, S_NB1, S_KB0, S_RG1, S_RG2, S_DB = 60, 61, 62, 63, 22, 23
S_WL, S_MJ = 36, 37
S_KT = 19
S_MOD = 6
S_STAMP = 64

G0 = f's_cmp_eq_u32 s{S_G}, 0'
G1 = f's_cmp_eq_u32 s{S_G}, 1'
TS0 = f's_bitcmp0_b32 s{S_V}, 0'
MODW = f's_cmp_lt_u32 s2, 192'
MAIN = f's_cmp_lt_u32 s2, 224'
EARLY = f's_cmp_lt_u32 s2, 128'
W7 = f's_cmp_eq_u32 s{S_V}, 7'
W4 = f's_cmp_eq_u32 s{S_V}, 4'
W0 = f's_cmp_eq_u32 s{S_V}, 0'
W3 = f's_cmp_eq_u32 s{S_V}, 3'
AGG = f's_cmp_eq_u32 s{S_MB1}, 7'
ROLES = {AGG: ('agg', True), G0: ('g0', True), G1: ('g0', False), TS0: ('ts0', True), MODW: ('modw', True), MAIN: ('main', True), EARLY: ('early', True), W7: ('w7', True), W4: ('w4', True), W0: ('w0', True), W3: ('w3', True)}

C_H0, C_H1, C_P0, C_PC, C_P1, C_W, C_K, C_SV, C_G0, C_G1, C_S0, C_S1, C_A, C_B = range(14)

LOG2E = 0x3fb8aa3b
ONES = 0x3f803f80
T0, T1, T2, T3, T4, T5 = (f's{S_T + k}' for k in range(6))


def sp(n):
    return f's[{n}:{n + 1}]'


def vr(n, k=1):
    return f'v{n}' if k == 1 else f'v[{n}:{n + k - 1}]'


def fhex(x):
    return hex(struct.unpack('<I', struct.pack('<f', x))[0])


def L(text):
    return [l.strip() for l in text.strip().split('\n') if l.strip()]


def lag_table():
    def rnd(l):
        u = struct.unpack('<I', struct.pack('<f', float(l)))[0]
        u = (u + 0x7FFF + ((u >> 16) & 1)) & 0xFFFF0000
        return int(struct.unpack('<f', struct.pack('<I', u))[0])
    idx = lambda l: l + (l >> 3) + 4
    rows = {(0, 0): (0, 1), (0, 1): (4, 1), (0, 2): (256, 2), (0, 3): (512, 288),
            (1, 0): (1280, 288), (1, 1): (516, 288), (1, 2): (1025, 1), (1, 3): (1025, 1)}
    out = ['.p2align 7', '.type lag_table,@object', 'lag_table:']
    for t in range(256):
        l0 = 2040 - 8 * t
        off = [4 * (idx(rnd(l0 - 3 + k)) - idx(l0) + 5) for k in range(11)] + [0]
        assert all(0 <= o < 256 for o in off)
        u, lane = t >> 6, t & 63
        p, step = rows[u >> 1, lane >> 4]
        a0 = 4 * idx(p + 8 * (16 * (u & 1) + (lane & 15)))
        assert a0 + 12 * step + 4 <= KTS
        w = [off[4 * j] | off[4 * j + 1] << 8 | off[4 * j + 2] << 16 | off[4 * j + 3] << 24 for j in range(3)] + [a0 | 4 * step << 16]
        out.append('.long ' + ', '.join(hex(x) for x in w))
    out.append('.size lag_table, 4096')
    return '\n'.join(out) + '\n'


class Gen:
    def __init__(self, stamps=None, opt=None):
        self.a = Asm()
        self.stamps = stamps
        self.stamp_names = {}
        self.o = dict(wsched=dict(b4=6), code_pf=1, touch='g0', n_pre=2, fprio=1, h_ahead=6, wd_pace=5, wd_pre=0,
                      g0first=1, s1at='b4', atom=1, convseq=1, packat=0, f2k=12)
        if opt:
            self.o.update(opt)
        self.wsteps = list(range(15, -1, -1))
        self.wpos = [16, 16]
        self.tsd = {}
        self.ht = {}

    def stamp(self, name):
        if self.stamps and name in self.stamps:
            k = self.stamps.index(name)
            self.stamp_names[k] = name
            self.a(f's_memrealtime {sp(S_STAMP + 2 * k)}')

    def barrier(self, name=None):
        self.a('s_waitcnt lgkmcnt(0)\ns_barrier')
        self.stamp(name)

    def masked(self, lanes, issue):
        self.a(f's_mov_b64 exec, {lanes}')
        t = issue()
        self.a('s_mov_b64 exec, -1')
        return t

    def poll(self, issue, tags, first, back=1, lanes=None):
        a = self.a
        a.wait(*(first if isinstance(first, list) else [first]))
        chk, done = a.label('chk'), a.label('ok')
        a(f's_mov_b32 s{S_SPIN}, 0')
        if lanes:
            a(f's_mov_b64 exec, {lanes}')
        a(f'{chk}:')
        a(f'v_cmp_ne_u64 vcc, {sp(S_TAG)}, {vr(tags[0], 2)}')
        for k, t in enumerate(tags[1:]):
            s = S_T + 2 * (k % 4)
            a(f'v_cmp_ne_u64 {sp(s)}, {sp(S_TAG)}, {vr(t, 2)}')
            if k % 4 == 3 or k == len(tags) - 2:
                for j in range(k % 4 + 1):
                    a(f's_or_b64 vcc, vcc, {sp(S_T + 2 * j)}')
        if len(tags) > 1:
            a(f's_cbranch_scc0 {done}')
        else:
            a(f's_cbranch_vccz {done}')
        a.ctx[chk] = True
        a(f's_add_u32 s{S_SPIN}, s{S_SPIN}, 1')
        a(f's_cmp_gt_u32 s{S_SPIN}, 0x40000')
        a(f's_cbranch_scc1 {done}')
        a(f's_sleep {back}')
        a('s_mov_b64 exec, vcc')
        issue()
        a('s_waitcnt vmcnt(0)')
        a(f's_branch {chk}')
        del a.ctx[chk]
        a(f'{done}:')
        a('s_mov_b64 exec, -1')

    def cond(self, cmp, then, other=None):
        a = self.a
        name, val = ROLES.get(cmp, (None, True))
        if name in a.ctx:
            (then if a.ctx[name] == val else (other or (lambda: None)))()
            return
        els, end = a.label('else'), a.label('end')
        a(cmp)
        a(f's_cbranch_scc0 {els}')
        a.ins[-1].role = ROLES.get(cmp)
        name = name or els
        a.ctx[name] = val
        then()
        if other:
            a(f's_branch {end}')
        a(f'{els}:')
        a.ctx[name] = not val
        if other:
            other()
            a(f'{end}:')
        del a.ctx[name]

    def cmul(self, d, z, w, t):
        self.a(f'v_pk_mul_f32 {vr(t, 2)}, {vr(z, 2)}, {vr(w, 2)} op_sel:[0,0] op_sel_hi:[0,1]')
        self.a(f'v_pk_fma_f32 {vr(d, 2)}, {vr(z, 2)}, {vr(w, 2)}, {vr(t, 2)} op_sel:[1,1,0] op_sel_hi:[1,0,1] neg_lo:[1,0,0]')

    def cexp(self, d, ar, ai, k, t):
        a = self.a
        if k == 1:
            a(f'v_exp_f32 v{t}, v{ar}\nv_fract_f32 v{t + 1}, v{ai}')
        else:
            a(f'v_mul_f32 v{t}, {fhex(k)}, v{ar}\nv_mul_f32 v{t + 1}, {fhex(k)}, v{ai}')
            a(f'v_exp_f32 v{t}, v{t}\nv_fract_f32 v{t + 1}, v{t + 1}')
        a(f'v_cos_f32 v{d}, v{t + 1}\nv_sin_f32 v{d + 1}, v{t + 1}')
        a(f'v_pk_mul_f32 {vr(d, 2)}, {vr(d, 2)}, {vr(t, 2)} op_sel:[0,0] op_sel_hi:[1,0]')

    def take_w(self, slot, low, grp=1):
        n = self.o['wsched'].get(slot, 0) if slot else 16
        steps = []
        for s in self.wsteps[:n]:
            if s >= low:
                steps.append((s, self.wpos[grp] - s))
                self.wpos[grp] = s
        self.wsteps = self.wsteps[len(steps):]
        return steps

    def wdma(self, steps, who=G1):
        a = self.a

        def body():
            for s, d in steps:
                a(f's_add_u32 m0, s{S_WL}, {L_W + s * 8192}')
                a(f'v_subrev_u32 v2, {114688 * d}, v2')
                a(f'global_load_lds_dwordx4 v2, {sp(S_WG)}')
                a(f's_add_u32 m0, s{S_WL}, {L_W + s * 8192 + 1024}')
                a(f'v_subrev_u32 v3, {114688 * d}, v3')
                self.twd = a(f'global_load_lds_dwordx4 v3, {sp(S_WU)}')
        if self.o.get('now'):
            self.twd = None
            return
        if steps:
            self.cond(who, body)

    def code_prefetch(self):
        self.a(f'''
        s_lshr_b32 {T2}, s2, 3
        s_lshl_b32 {T2}, {T2}, 3
        v_cmp_gt_u32 vcc, 24, v0
        v_add_u32 v107, {T2}, v0
        s_mov_b32 m0, {L_GB}
        v_cndmask_b32 v107, v107, v0, vcc
        v_cmp_gt_u32 vcc, 32, v0
        v_lshlrev_b32 v107, 7, v107
        v_min_u32 v107, L_exit-L_pc, v107
        s_and_saveexec_b64 {sp(S_T)}, vcc
        s_cbranch_execz L_nopf
        ''')
        self.a.ctx['pf'] = True
        self.a(f'global_load_lds_dword v107, {sp(S_T + 8)}')
        del self.a.ctx['pf']
        self.a('L_nopf:\ns_mov_b64 exec, -1')

    def touch(self):
        self.a(f'''
        s_bitcmp1_b32 s{S_U}, 0
        s_cselect_b32 {T4}, s{S_WU}, s{S_WG}
        s_cselect_b32 {T5}, s{S_WU + 1}, s{S_WG + 1}
        s_lshl_b32 {T2}, s{S_IDX}, 1
        s_lshr_b32 {T3}, s{S_U}, 1
        s_add_u32 {T2}, {T2}, {T3}
        s_mul_i32 {T2}, {T2}, {8 * 3584}
        s_lshr_b32 {T3}, s{S_XCD}, 1
        s_mul_i32 {T3}, {T3}, 896
        s_add_u32 {T2}, {T2}, {T3}
        v_lshrrev_b32 v107, 3, v1
        v_mul_u32_u24 v107, {3584 - 1024}, v107
        v_lshl_add_u32 v107, v1, 7, v107
        s_mov_b32 m0, {L_GB}
        v_add_u32 v107, {T2}, v107
        s_mov_b32 exec_lo, 0x7f7f7f7f
        s_mov_b32 exec_hi, 0x7f7f7f7f
        global_load_lds_dword v107, {sp(S_T + 4)}
        s_mov_b64 exec, -1
        ''')

    def pack_load(self):
        a = self.a
        if self.o.get('nopack'):
            return
        a(f'''
        v_lshrrev_b32 v60, 5, v1
        v_lshlrev_b32 v60, 13, v60
        v_and_b32 v61, 31, v1
        v_lshl_add_u32 v60, v61, 2, v60
        s_lshl_b32 {T2}, s{S_IDX}, 16
        s_lshl_b32 {T3}, s{S_U}, 14
        s_add_u32 {T2}, {T2}, {T3}
        s_lshl_b32 {T3}, s{S_XCD}, 7
        s_add_u32 {T2}, {T2}, {T3}
        s_add_u32 {T2}, {T2}, 4096
        v_add_u32 v60, {T2}, v60
        ''')
        for j in range(8):
            self.tpk = a(f'global_load_dword v{112 + j}, v60, {sp(S_WD)} offset:{1024 * j - 4096}')

    def pack_store(self):
        a = self.a
        if self.o.get('nopack'):
            self.tps = None
            return
        a(f'''
        s_mul_i32 {T2}, s{S_XCD}, 229376
        s_lshl_b32 {T3}, s{S_IDX}, 13
        s_add_u32 {T2}, {T2}, {T3}
        s_add_u32 {T2}, {T2}, s{S_WL}
        s_add_u32 {T2}, {T2}, {WS_WDP}
        v_lshl_add_u32 v60, v1, 4, {T2}
        s_mov_b32 {T2}, 0x05040100
        s_mov_b32 {T3}, 0x07060302
        ''')
        a.wait(self.tpk)
        for e in range(2):
            for jj in range(4):
                a(f'v_perm_b32 v{16 + 4 * e + jj}, v{113 + 2 * jj}, v{112 + 2 * jj}, {(T2, T3)[e]}')
            self.tps = a(f'global_store_dwordx4 v60, {vr(16 + 4 * e, 4)}, {sp(S_WS)} offset:{1024 * e} sc1')

    def front(self):
        a = self.a
        a('s_cmp_ge_u32 s2, 256\ns_cbranch_scc1 L_exit')
        a('s_load_dwordx16 s[4:19], s[0:1], 0\ns_load_dwordx16 s[20:35], s[0:1], 64\ns_load_dwordx2 s[38:39], s[0:1], 136')
        self.stamp('start')
        a(f'''
        s_getpc_b64 {sp(S_T + 8)}
        L_pc:
        ''')
        if self.o['code_pf']:
            self.code_prefetch()
        a(f'''
        s_mov_b32 m0, {L_CNT}
        v_mov_b32 v40, 0
        v_mov_b32 v41, 0
        ds_write_addtid_b32 v40 offset:0
        v_and_b32 v99, 255, v0
        v_lshlrev_b32 v37, 4, v99
        v_add_u32 v37, lag_table-L_pc, v37
        v_lshrrev_b32 v2, 6, v0
        v_and_b32 v1, 63, v0
        v_readfirstlane_b32 s{S_V}, v2
        s_and_b32 s{S_XCD}, s2, 7
        s_lshr_b32 s{S_IDX}, s2, 3
        s_lshl_b32 s{S_P}, s{S_XCD}, 5
        s_add_u32 s{S_P}, s{S_P}, s{S_IDX}
        s_lshr_b32 s{S_G}, s{S_V}, 2
        s_and_b32 s{S_U}, s{S_V}, 3
        ''')
        a(f'''
        v_and_b32 v32, 1, v0
        v_lshlrev_b32 v33, 1, v0
        v_mul_u32_u24 v32, 4094, v32
        s_lshl_b32 {T0}, s2, 13
        v_add3_u32 v32, v32, v33, {T0}
        ''')
        a(f'''
        s_lshl_b32 {T0}, s{S_P}, 9
        s_lshl_b32 {T1}, s{S_U}, 7
        s_add_u32 {T0}, {T0}, {T1}
        v_lshl_add_u32 v33, v1, 1, {T0}
        ''')
        for r in range(100, 106):
            a(f'v_mov_b32 v{r}, 0')
        a(f'''
        s_and_b32 {T2}, s2, 3
        s_lshl_b32 {T3}, {T2}, 7
        s_lshl_b32 {T4}, s{S_U}, 5
        s_add_u32 {T3}, {T3}, {T4}
        v_lshrrev_b32 v34, 3, v1
        v_add_u32 v34, {T3}, v34
        v_mul_u32_u24 v34, 6144, v34
        v_and_b32 v35, 7, v1
        v_lshl_add_u32 v34, v35, 4, v34
        s_lshr_b32 {T3}, s2, 2
        s_min_u32 {T3}, {T3}, 47
        s_lshl_b32 {T3}, {T3}, 7
        v_add_u32 v34, {T3}, v34
        s_lshl_b32 {T2}, {T2}, 8
        v_lshl_add_u32 v36, v1, 2, {T2}
        s_lshl_b32 {T5}, s{S_P}, 2
        s_waitcnt lgkmcnt(0)
        ''')
        self.stamp('karg')
        if self.o['fprio']:
            self.cond(G1, lambda: a('s_setprio 1'))
        for i in range(4):
            tx = a(f'global_load_dword v{4 + i}, v32, {sp(S_X)} offset:{1024 * i}')
        self.stamp('i1')
        a(f's_load_dwordx2 {sp(S_TAG)}, {sp(S_WS)}, 0')
        a(f's_load_dword s{S_LDTV}, {sp(S_LDT)}, {T5}')
        a(f's_load_dword s{S_DSKV}, {sp(S_DSK)}, {T5}')
        a(f'global_load_short_d16_hi v100, v33, {sp(S_ARE)}')
        self.tp = [a(f'global_load_short_d16_hi v101, v33, {sp(S_AIM)}')]

        def g1loads():
            for r, s in ((102, S_BRE), (103, S_BIM), (104, S_CRE), (105, S_CIM)):
                t = a(f'global_load_short_d16_hi v{r}, v33, {sp(s)}')
            self.tp.append(t)

        def g0loads():
            a(f'{W3}\ns_cselect_b64 exec, -1, 1')
            self.tc = a(f'global_load_dword v106, v36, {sp(S_C)}')
            a(f'{MODW}\ns_cselect_b64 exec, -1, 1\ns_lshl_b32 {T0}, s{S_U}, 12')
            for i in range(4):
                a(f's_add_u32 m0, {T0}, {L_WM + 1024 * i}')
                if i:
                    a(f'v_add_u32 v34, {8 * 6144}, v34')
                self.tw = a(f'global_load_lds_dwordx4 v34, {sp(S_WM)}')
            a('s_mov_b64 exec, -1')
        self.cond(G1, g1loads)
        a('s_barrier')
        self.cond(G0, g0loads)
        self.stamp('i2')
        self.tt = a(f'global_load_dwordx4 v[108:111], v37, {sp(S_T + 8)}')
        a(f'''
        s_and_b32 s{S_MB1}, s{S_XCD}, 1
        s_lshl_b32 s{S_MB1}, s{S_MB1}, 2
        s_and_b32 {T0}, s{S_IDX}, 3
        s_add_u32 s{S_MB1}, s{S_MB1}, {T0}
        s_lshr_b32 s{S_DB}, s{S_IDX}, 2
        s_min_u32 {T1}, s{S_MB1}, 6
        s_cmp_lt_u32 s{S_DB}, 7
        s_cselect_b32 {T1}, s{S_DB}, {T1}
        s_lshr_b32 s{S_NB1}, s{S_XCD}, 1
        s_mul_i32 s{S_NB1}, s{S_NB1}, 7
        s_add_u32 s{S_NB1}, s{S_NB1}, {T1}
        s_lshl_b32 s{S_WL}, s{S_U}, 11
        ''')
        self.wsrc()
        self.wdma(self.take_w('start', 10, 0), G0)
        self.stamp('issued')
        a(f'''
        v_bfe_u32 v37, v0, 6, 1
        v_mul_u32_u24 v37, 4608, v37
        v_lshl_add_u32 v37, v1, 3, v37
        v_add_u32 v37, {L_H}, v37
        ds_write_b64 v37, v[40:41]
        ''')
        a(f'''
        s_mul_i32 {T0}, s{S_G}, {KTS}
        s_add_u32 s{S_KT}, {T0}, {L_KT}
        v_mov_b32 v37, s{S_KT}
        ds_write2_b64 v37, v[40:41], v[40:41] offset0:0 offset1:1
        ''')
        a(f'''
        v_and_b32 v36, 15, v1
        v_lshrrev_b32 v37, 4, v1
        v_mul_u32_u24 v38, {RS}, v36
        v_lshl_add_u32 v38, v37, 4, v38
        s_lshr_b32 {T0}, s{S_U}, 1
        s_and_b32 {T1}, s{S_U}, 1
        s_mul_i32 {T2}, s{S_G}, {NP * RS}
        s_mul_i32 {T3}, {T0}, {16 * RS}
        s_add_u32 {T2}, {T2}, {T3}
        v_add_u32 v120, {T2}, v38
        s_mul_i32 {T2}, s{S_G}, {32 * RS}
        s_mul_i32 {T3}, {T1}, {16 * RS}
        s_add_u32 {T2}, {T2}, {T3}
        s_add_u32 {T2}, {T2}, {L_Q}
        v_add_u32 v121, {T2}, v38
        v_bfe_u32 v38, v1, 2, 2
        v_lshl_add_u32 v38, v37, 3, v38
        v_lshlrev_b32 v38, 7, v38
        v_and_b32 v39, 3, v1
        v_lshl_add_u32 v38, v39, 3, v38
        s_lshl_b32 {T2}, s{S_V}, 5
        s_add_u32 {T2}, {T2}, {L_WM}
        v_add_u32 v90, {T2}, v38
        v_lshlrev_b32 v91, 4, v37
        v_add_u32 v91, {L_SILU}, v91
        v_lshlrev_b32 v92, 4, v36
        v_add_u32 v92, {L_SP}, v92
        ''')
        a(f'''
        s_lshl_b32 {T0}, s2, 13
        s_add_u32 {T0}, {T0}, {WS_XT}
        v_lshl_add_u32 v98, v0, 4, {T0}
        v_and_b32 v33, 1, v1
        v_lshrrev_b32 v34, 4, v1
        v_lshl_add_u32 v33, v33, 2, v34
        s_lshl_b32 {T0}, s{S_V}, 6
        s_add_u32 {T0}, {T0}, {L_SP}
        v_lshl_add_u32 v97, v33, 3, {T0}
        s_waitcnt lgkmcnt(0)
        s_add_u32 s{S_TAG}, s{S_TAG}, 1
        s_addc_u32 s{S_TAG + 1}, s{S_TAG + 1}, 0
        s_lshl_b32 {T0}, s{S_LDTV}, 16
        s_and_b32 {T1}, s{S_LDTV}, 0xffff0000
        s_cmp_ge_u32 s{S_U}, 2
        s_cselect_b32 {T0}, {T1}, {T0}
        v_mov_b32 v32, {LOG2E}
        v_mul_f32 v32, {T0}, v32
        v_exp_f32 v32, v32
        s_mov_b32 {T0}, {ONES}
        v_cvt_pk_bf16_f32 v32, v32, v32
        v_and_b32 v32, 0xffff0000, v32
        ''')
        self.stamp('pre')
        self.cond(G0, lambda: a.wait(tx), lambda: a.wait(tx))
        self.stamp('xarr')
        self.txt = a(f'global_store_dwordx4 v98, v[4:7], {sp(S_WS)} sc1')
        for i in range(4):
            a(f'v_dot2_f32_bf16 v{36 + i}, v{4 + i}, {T0}, 0')
        for i in range(4):
            a(f'v_dot2_f32_bf16 v{40 + i}, v{4 + i}, v{4 + i}, 0')
        a(f'''
        v_permlane32_swap_b32 v36, v38
        v_permlane32_swap_b32 v37, v39
        s_lshr_b32 {T0}, s{S_U}, 1
        v_permlane32_swap_b32 v40, v42
        v_permlane32_swap_b32 v41, v43
        v_add_f32 v36, v36, v38
        v_add_f32 v37, v37, v39
        v_add_f32 v40, v40, v42
        v_add_f32 v41, v41, v43
        v_permlane16_swap_b32 v36, v37
        s_and_b32 {T1}, s{S_U}, 1
        v_permlane16_swap_b32 v40, v41
        v_add_f32 v36, v36, v37
        v_add_f32 v37, v40, v41
        s_lshl_b32 {T1}, {T1}, 8
        ''')
        for ctl in ('row_ror:8', 'row_ror:4', 'row_ror:2'):
            for r in (36, 37):
                a(f'v_add_f32_dpp v{r}, v{r}, v{r} {ctl} row_mask:0xf bank_mask:0xf')
        a('ds_write_b64 v97, v[36:37]')
        self.cond(G1, lambda: self.sig(C_B))
        self.stamp('part')

    def chains(self):
        a = self.a

        def scale():
            a.wait(*self.tp)
            a(f'''
            v_mul_f32 v33, v32, v100
            v_mul_f32 v34, v32, v101
            v_mul_f32 v33, {LOG2E}, v33
            v_mul_f32 v34, 0.15915494, v34
            ''')

        def qchain():
            a(f's_mul_i32 {T0}, {T0}, {32 * RS}\ns_add_u32 {T0}, {T0}, {T1}\ns_add_u32 m0, {T0}, {L_Q}')
            scale()
            self.cexp(36, 33, 34, 8.0, 38)
            a('v_mov_b32 v44, 0x3f80\nds_write_addtid_b32 v44 offset:0')
            z = 36
            for b in range(1, 32):
                c = 44 + (b & 1)
                a(f'v_cvt_pk_bf16_f32 v{c}, v{z}, v{z + 1}')
                if b < 31:
                    n = 40 + 2 * (b & 1)
                    self.cmul(n, z, 36, 38)
                    z = n
                a(f'ds_write_addtid_b32 v{c} offset:{RS * b}')

        def pchain():
            a(f's_mul_i32 {T0}, {T0}, {NP * RS}\ns_add_u32 {T0}, {T0}, {T1}\ns_add_u32 m0, {T0}, {L_P}')
            scale()
            a('v_mul_f32 v102, v32, v102\nv_mul_f32 v103, v32, v103')
            self.cmul(48, 104, 102, 38)
            self.cexp(36, 33, 34, 1, 38)
            self.cexp(40, 33, 34, 256.0, 38)
            cnt = [0]

            def put(row, z):
                c = 44 + (cnt[0] & 1); cnt[0] += 1
                a(f'v_cvt_pk_bf16_f32 v{c}, v{z}, -v{z + 1}')
                a(f'ds_write_addtid_b32 v{c} offset:{RS * row}')
            put(0, 48)
            for r in range(1, 8):
                self.cmul(48 + 2 * r, 46 + 2 * r, 36, 38)
                put(r, 48 + 2 * r)
            for k in range(4):
                self.cmul(50 + 4 * k, 48 + 4 * k, 40, 38)
                put(8 + k, 50 + 4 * k)
            self.cmul(56, 58, 40, 38); put(20, 56)
            self.cmul(58, 56, 40, 38); put(21, 58)
            z = 50
            for r in (12, 13, 14, 15, 17, 18, 19):
                n = 48 if z == 50 else 50
                self.cmul(n, z, 40, 38); put(r, n)
                if r == 15:
                    a(f'ds_write_addtid_b32 v{44 + ((cnt[0] - 1) & 1)} offset:{RS * 16}')
                z = n


        def silu():
            a(f'''
            v_lshlrev_b32 v36, 16, v106
            v_and_b32 v37, 0xffff0000, v106
            v_mul_f32 v38, {hex(LOG2E | 0x80000000)}, v36
            v_mul_f32 v39, {hex(LOG2E | 0x80000000)}, v37
            v_exp_f32 v38, v38
            v_exp_f32 v39, v39
            s_mov_b32 m0, {L_SILU}
            v_add_f32 v38, 1.0, v38
            v_add_f32 v39, 1.0, v39
            v_rcp_f32 v38, v38
            v_rcp_f32 v39, v39
            v_mul_f32 v36, v36, v38
            v_mul_f32 v37, v37, v39
            v_cvt_pk_bf16_f32 v36, v36, v37
            ds_write_addtid_b32 v36 offset:0
            ''')
        self.cond(G0, qchain, pchain)
        self.stamp('chain')
        a(f'''
        s_lshl_b32 {T0}, s{S_V}, 12
        s_lshl_b32 {T1}, s2, 4
        s_add_u32 {T0}, {T0}, {T1}
        s_add_u32 {T0}, {T0}, {WS_FX}
        ''')
        self.flag(52, 48, 1, pre=lambda: a.wait(self.txt))

        def g0_jobs():
            if self.o['touch'] == 'g0a':
                self.touch()
            self.cond(W3, silu)
            self.sig(C_A)
            self.await_(C_A, C_B)
            self.cond(W0, self.stats_read)
            self.cond(MODW, self.mod_read)
            self.cond(W0, self.stats_final)
            self.cond(MODW, self.mod_mma)
            self.stamp('jobs')
            if self.o['touch'] == 'g0':
                self.touch()

        def g1_jobs():
            if self.o['packat']:
                self.cond(MAIN, self.pack_load)
            if self.o['touch'] == 'g1':
                self.touch()
        self.cond(G0, g0_jobs, g1_jobs)
        if self.o['fprio']:
            a('s_setprio 0')
        self.stamp('preB2')
        self.barrier('B2')

    def meanstd(self, m, e2, n, t):
        a = self.a
        for k in range(n):
            a(f'v_fma_f32 v{e2 + k}, -v{m + k}, v{m + k}, v{e2 + k}')
        for k in range(n):
            a(f'v_max_f32 v{e2 + k}, 0, v{e2 + k}')
        o = e2 + (1 if n == 2 else 0)
        for add in (True, False):
            a(f'v_cvt_pk_bf16_f32 v{t}, v{e2}, v{o}')
            a(f'v_lshlrev_b32 v{e2}, 16, v{t}')
            if n == 2:
                a(f'v_and_b32 v{o}, 0xffff0000, v{t}')
            for k in range(n):
                a(f'v_add_f32 v{e2 + k}, {fhex(1e-5)}, v{e2 + k}' if add else f'v_sqrt_f32 v{e2 + k}, v{e2 + k}')

    def stats_read(self):
        a = self.a
        a('ds_read_b128 v[48:51], v92')
        self.tsr = a('ds_read_b128 v[52:55], v92 offset:256')

    def stats_final(self):
        a = self.a
        a(f'''
        s_lshl_b32 {T2}, s2, 6
        s_add_u32 {T2}, {T2}, {WS_ST1}
        v_lshl_add_u32 v39, v1, 4, {T2}
        s_mov_b32 {T2}, {fhex(1 / 512)}
        v_mov_b32 v58, s{S_TAG}
        v_mov_b32 v59, s{S_TAG + 1}
        ''')
        a.wait(self.tsr)
        for r in range(48, 52):
            a(f'v_add_f32 v{r}, v{r}, v{r + 4}')
        for sh in (4, 8):
            for r in range(48, 52):
                a(f'v_add_f32_dpp v{r}, v{r}, v{r} row_ror:{sh} row_mask:0xf bank_mask:0xf')
        for d, r in ((52, 48), (54, 49), (53, 50), (55, 51)):
            a(f'v_mul_f32 v{d}, {T2}, v{r}')
        self.meanstd(52, 54, 2, 48)
        a(f'''
        v_cvt_pk_bf16_f32 v56, v52, v54
        v_cvt_pk_bf16_f32 v57, v53, v55
        s_mov_b64 exec, 15
        global_store_dwordx4 v39, v[56:59], {sp(S_WS)} sc1
        s_mov_b64 exec, -1
        ''')

    def mod_read(self):
        a = self.a
        self.tm = []
        for ks in range(4):
            a(f'ds_read_b128 {vr(192 + 8 * ks, 4)}, v91 offset:{64 * ks}')
            a(f'ds_read_b64_tr_b16 {vr(196 + 8 * ks, 2)}, v90 offset:{4096 * ks}')
            self.tm.append(a(f'ds_read_b64_tr_b16 {vr(198 + 8 * ks, 2)}, v90 offset:{4096 * ks + 512}'))

    def mod_mma(self):
        a = self.a
        for ks in range(4):
            a.wait(self.tm[ks])
            a(f'v_mfma_f32_16x16x32_bf16 v[44:47], {vr(192 + 8 * ks, 4)}, {vr(196 + 8 * ks, 4)}, {"0" if ks == 0 else "v[44:47]"}')
        a(f'''
        s_lshl_b32 {T2}, s2, 9
        s_lshl_b32 {T3}, s{S_V}, 7
        s_add_u32 {T2}, {T2}, {T3}
        s_add_u32 {T2}, {T2}, {WS_MODP}
        v_lshl_add_u32 v94, v1, 3, {T2}
        v_mov_b32 v58, s{S_TAG}
        v_mov_b32 v59, s{S_TAG + 1}
        v_mov_b32 v56, v44
        v_mov_b32_dpp v57, v44 quad_perm:[1,1,3,3] row_mask:0xf bank_mask:0xf bound_ctrl:0
        s_mov_b64 exec, 0x5555
        global_store_dwordx4 v94, v[56:59], {sp(S_WS)} sc1
        s_mov_b64 exec, -1
        ''')

    def kprod(self):
        a = self.a
        toks = []
        for ks in range(8):
            a(f'ds_read_b128 {vr(128 + 8 * ks, 4)}, v120 offset:{64 * ks}')
            toks.append(a(f'ds_read_b128 {vr(132 + 8 * ks, 4)}, v121 offset:{64 * ks}'))
        self.wdma(self.take_w('kp', 8))
        SD = 'dst_sel:DWORD dst_unused:UNUSED_PAD src0_sel:DWORD src1_sel:'
        a(f'''
        v_add_u32_sdwa v122, s{S_KT}, v111 {SD}WORD_0
        v_mul_u32_u24 v36, 36, v99
        v_add_u32_sdwa v123, v122, v111 {SD}WORD_1
        s_add_u32 {T2}, s{S_KT}, 9176
        v_add_u32_sdwa v124, v123, v111 {SD}WORD_1
        v_sub_u32 v36, {T2}, v36
        v_add_u32_sdwa v125, v124, v111 {SD}WORD_1
        ''')
        for k in range(11):
            a(f'v_add_u32_sdwa v{64 + k}, v36, v{108 + k // 4} {SD}BYTE_{k % 4}')
        a(f'''
        v_lshrrev_b32 v36, 1, v0
        v_lshlrev_b32 v36, 13, v36
        v_and_b32 v37, 1, v1
        v_lshl_add_u32 v36, v37, 4, v36
        v_and_b32 v37, 3, v1
        s_lshl_b32 {T0}, s{S_P}, 5
        s_add_u32 {T0}, {T0}, {WS_XT}
        v_bfe_u32 v38, v1, 2, 2
        v_add_u32 v12, {T0}, v36
        v_cmp_eq_u32 vcc, 3, v38
        v_lshlrev_b32 v14, 5, v0
        v_addc_co_u32 v36, vcc, 0, v38, vcc
        v_add_u32 v14, {WS_ST1}, v14
        v_lshlrev_b32 v36, 14, v36
        v_lshl_add_u32 v36, v37, 9, v36
        s_lshl_b32 {T0}, s{S_XCD}, 11
        s_lshl_b32 {T1}, s{S_IDX}, 4
        s_add_u32 {T0}, {T0}, {T1}
        s_add_u32 {T0}, {T0}, {WS_MODP}
        v_add_u32 v15, {T0}, v36
        s_lshl_b32 {T0}, s{S_XCD}, 12
        s_lshl_b32 {T1}, s{S_V}, 9
        s_add_u32 {T0}, {T0}, {T1}
        s_add_u32 {T0}, {T0}, {WS_FX}
        v_lshl_add_u32 v13, v1, 4, {T0}
        ''')
        fill = L(f'''
        s_and_b32 {T0}, s{S_IDX}, 3
        s_lshl_b32 s{S_RG2}, s{S_XCD}, 2
        s_add_u32 s{S_RG2}, s{S_RG2}, {T0}
        s_lshl_b32 s{S_RG1}, s{S_G}, 5
        s_lshl_b32 {T0}, s{S_MB1}, 2
        s_add_u32 {T0}, {T0}, s{S_U}
        s_cmp_lt_u32 s2, 224
        s_cselect_b32 {T0}, {T0}, s{S_RG2}
        s_add_u32 s{S_RG1}, s{S_RG1}, {T0}
        s_mul_i32 s{S_KB0}, s{S_V}, 7
        s_lshr_b32 s{S_KB0}, s{S_KB0}, 1
        s_mul_i32 {T0}, s{S_G}, 16640
        v_lshl_add_u32 v126, v99, 4, {T0}
        ''')
        for ks in range(8):
            a.wait(toks[ks])
            a(f'v_mfma_f32_16x16x32_bf16 v[40:43], {vr(128 + 8 * ks, 4)}, {vr(132 + 8 * ks, 4)}, {"0" if ks == 0 else "v[40:43]"}')
            a(fill[:2]); fill = fill[2:]
        a(fill)
        for i in range(4):
            a(f'ds_write_b32 v{122 + i}, v{40 + i}')
        self.barrier('B3')

    def wsrc(self):
        self.a(f'''
        v_bfe_u32 v57, v1, 1, 2
        v_bfe_u32 v58, v1, 4, 1
        v_xor_b32 v57, v57, v58
        s_and_b32 {T0}, s{S_U}, 1
        s_lshl_b32 {T0}, {T0}, 1
        v_xor_b32 v57, {T0}, v57
        v_bfe_u32 v59, v0, 3, 5
        v_mul_u32_u24 v59, 3584, v59
        v_and_b32 v58, 1, v1
        v_lshl_add_u32 v59, v58, 4, v59
        s_lshl_b32 {T0}, s{S_NB1}, 7
        s_add_u32 {T0}, {T0}, {16 * 114688}
        v_add_u32 v59, {T0}, v59
        v_lshl_add_u32 v2, v57, 5, v59
        v_xor_b32 v3, 64, v2
        ''')

    def s1_issue(self, first=False):
        a = self.a
        if first:
            a(f'v_mov_b32 v50, s{S_TAG}\nv_mov_b32 v51, s{S_TAG + 1}\ns_mov_b64 exec, 0xffff')
        a(f'global_load_dwordx4 v[48:51], v15, {sp(S_WS)} sc1')
        if first:
            a('s_mov_b64 exec, -1')
        a(f'global_load_dwordx4 v[40:43], v14, {sp(S_WS)} sc1')
        return a(f'global_load_dwordx4 v[44:47], v14, {sp(S_WS)} offset:16 sc1')

    def fx_load(self):
        return self.a(f'global_load_dwordx2 v[32:33], v13, {sp(S_WS)} sc1')

    def s1_start(self):
        self.stamp('preS1')
        self.a('s_mov_b32 exec_hi, 0')
        self.poll(self.fx_load, [32], self.tfx)
        t = self.s1_issue(True)
        return t, self.a(f'global_load_dwordx4 v[4:7], v12, {sp(S_WS)} sc1')

    def expand(self):
        a = self.a

        def s1(pos):
            if self.o['s1at'] == pos:
                self.cond(G0, lambda: setattr(self, 'ts1', self.s1_start()))
        a('s_mov_b32 exec_hi, 0')
        self.tfx = self.fx_load()
        a('s_mov_b32 exec_hi, -1')
        for k in range(11):
            t = a(f'ds_read_b32 v{64 + k}, v{64 + k}')
        s1('x')
        a(f'''
        v_lshrrev_b32 v76, 3, v1
        v_mul_u32_u24 v76, {4160 - 32}, v76
        v_lshl_add_u32 v76, v1, 2, v76
        v_mov_b32 v77, 0
        v_and_b32 v57, 3, v1
        v_bfe_u32 v58, v1, 2, 2
        v_mul_u32_u24 v56, 4160, v57
        v_lshrrev_b32 v57, 4, v1
        v_lshl_add_u32 v56, v57, 4, v56
        v_lshlrev_b32 v58, 3, v58
        v_sub_u32 v56, v56, v58
        s_lshr_b32 {T0}, s{S_U}, 1
        s_and_b32 {T1}, s{S_U}, 1
        s_lshl_b32 {T1}, {T1}, 8
        s_mul_i32 {T2}, {T0}, 16640
        s_sub_u32 {T2}, {T2}, {T1}
        s_add_u32 {T2}, {T2}, {L_CP + 280}
        v_add_u32 v24, {T2}, v56
        ''')
        self.cond(W7, lambda: a(f'ds_write_b32 v76, v77 offset:{L_CP + 4096}'))
        self.wdma(self.take_w('x1', 5))
        a.wait(t)
        for c in range(4):
            for k in range(4):
                lo = c - 2 * k + 7
                a(f'v_cvt_pk_bf16_f32 v{80 + 4 * c + k}, v{64 + lo}, v{64 + lo - 1}')
            a(f'ds_write_b128 v126, {vr(80 + 4 * c, 4)} offset:{L_CP + 4160 * c}')
        s1('x2')
        self.wdma(self.take_w('x2', 5))
        self.barrier('B4')

    def afrags(self, g):
        a = self.a
        fill = L(f'''
        v_lshrrev_b32 v57, 4, v1
        v_and_b32 v56, 15, v1
        v_lshlrev_b32 v58, 5, v56
        v_lshl_add_u32 v58, v57, 4, v58
        s_lshr_b32 {T0}, s{S_U}, 1
        s_and_b32 {T1}, s{S_U}, 1
        s_lshl_b32 {T1}, {T1}, 8
        s_mul_i32 {T2}, {T0}, 4608
        s_sub_u32 {T2}, {T2}, {T1}
        s_add_u32 {T2}, {T2}, {L_H + 288}
        v_add_u32 v25, {T2}, v58
        v_lshl_add_u32 v56, v57, 2, v56
        v_and_b32 v56, 15, v56
        v_lshl_add_u32 v56, v57, 4, v56
        s_lshl_b32 {T2}, s{S_U}, 12
        s_add_u32 {T2}, {T2}, {L_PART}
        v_lshl_add_u32 v26, v56, 4, {T2}
        v_lshrrev_b32 v56, 2, v1
        v_and_b32 v57, 3, v1
        v_lshl_add_u32 v56, v57, 2, v56
        v_and_b32 v56, 15, v56
        v_lshl_add_u32 v56, v57, 4, v56
        s_lshl_b32 {T2}, s{S_U}, 10
        s_add_u32 {T2}, {T2}, {L_PART}
        v_lshl_add_u32 v27, v56, 4, {T2}
        v_lshlrev_b32 v28, 3, v0
        v_add_u32 v28, {L_H + 512}, v28
        v_lshrrev_b32 v56, 3, v0
        v_lshlrev_b32 v56, 15, v56
        v_and_b32 v57, 7, v1
        v_lshl_add_u32 v56, v57, 4, v56
        s_lshl_b32 {T2}, s{S_P}, 7
        s_add_u32 {T2}, {T2}, {WS_X1}
        v_add_u32 v29, {T2}, v56
        v_add_u32 v30, {WS_X1S - WS_X1}, v29
        v_mov_b32 v31, {WS_MODP}
        ''')
        for dl in range(4):
            for m in range(4 + 4 * g):
                r = self.areg(g, dl, m)
                off = 2 * (1888 - 256 * m - 32 * dl)
                a(f'ds_read_b64 {vr(r, 2)}, v24 offset:{off}')
                a(f'ds_read_b64 {vr(r + 2, 2)}, v24 offset:{off + 8}')
                a(fill[:2]); fill = fill[2:]
        a(fill)

    @staticmethod
    def areg(g, dl, m):
        return 128 + (dl * 8 + m) * 4 if g else 64 + (dl * 4 + m) * 4

    def hbuild(self, toks, done):
        a = self.a
        tok = toks[1]
        self.poll(self.s1_issue, [42, 46, 50], toks[0])
        st = (40, 41, 44, 45)
        a(f'''
        v_add_f32_dpp v48, v48, v48 quad_perm:[1,0,3,2] row_mask:0xf bank_mask:0xf
        v_add_f32_dpp v49, v49, v49 quad_perm:[1,0,3,2] row_mask:0xf bank_mask:0xf
        v_bfe_u32 v51, v1, 2, 1
        v_add_f32_dpp v48, v48, v48 quad_perm:[2,3,0,1] row_mask:0xf bank_mask:0xf
        v_add_f32_dpp v49, v49, v49 quad_perm:[2,3,0,1] row_mask:0xf bank_mask:0xf
        v_cvt_f32_u32 v51, v51
        v_cvt_pk_bf16_f32 v50, v48, v49
        v_lshlrev_b32 v48, 16, v50
        v_and_b32 v49, 0xffff0000, v50
        v_add_f32 v48, v48, v51
        v_add_f32 v49, v49, v51
        v_cvt_pk_bf16_f32 v50, v48, v49
        ''')
        for k in range(4):
            a(f'v_readlane_b32 s{S_MOD + 2 * k + 1}, v50, {4 * k}')
        for i in range(4):
            a(f'v_and_b32 v{53 + 2 * i}, 0xffff0000, v{st[i]}')
            a(f'v_lshlrev_b32 v{52 + 2 * i}, 16, v{st[i]}')
            a(f'v_rcp_f32 v{53 + 2 * i}, v{53 + 2 * i}')
        a(f's_mov_b32 s{S_MOD + 9}, s{S_DSKV}')
        for k in range(5):
            a(f's_lshl_b32 s{S_MOD + 2 * k}, s{S_MOD + 2 * k + 1}, 16')
            a(f's_and_b32 s{S_MOD + 2 * k + 1}, s{S_MOD + 2 * k + 1}, 0xffff0000')
        for ch in range(2):
            a(f'v_mov_b32 v{48 + ch}, s{S_MOD + ch}')
            a(f'v_mov_b32 v{14 + ch}, s{S_MOD + 8 + ch}')
            a(f'v_mul_f32 v{14 + ch}, s{S_MOD + 4 + ch}, v{14 + ch}')
        for k in range(8):
            a(f'v_mul_f32 v{40 + k}, s{S_MOD + 2 + (k & 1)}, v{53 + 2 * (k >> 1)}')
        a.wait(tok)
        self.stamp('S1')
        for i in range(4):
            x = 32 + 2 * i
            a(f'v_lshlrev_b32 v{x}, 16, v{4 + i}\nv_and_b32 v{x + 1}, 0xffff0000, v{4 + i}')
        for k in range(8):
            a(f'v_sub_f32 v{32 + k}, v{32 + k}, v{52 + 2 * (k >> 1)}')
        for k in range(8):
            a(f'v_fma_f32 v{32 + k}, v{32 + k}, v{40 + k}, v{48 + (k & 1)}')
        for ch in range(2):
            a(f'v_cvt_pk_bf16_f32 v{8 + 2 * ch}, v{32 + ch}, v{34 + ch}')
            a(f'v_cvt_pk_bf16_f32 v{9 + 2 * ch}, v{36 + ch}, v{38 + ch}')
            a(f'ds_write_b64 v28, {vr(8 + 2 * ch, 2)} offset:{4608 * ch}')
        done()

    def conv(self, g, hooks, pre_write):
        a = self.a
        nb = 4 + 4 * g
        breg = lambda dl, mp: (64 + 32 * (dl & 1) if g else 32 + 16 * (dl & 1)) + 4 * mp
        acc = (16, 20, 32, 36) if g else (16, 20, 128, 132)
        toks = {}

        def rd(dl):
            for mp in range(nb):
                toks[dl, mp] = a(f'ds_read_b128 {vr(breg(dl, mp), 4)}, v25 offset:{192 - 64 * dl + 512 * mp}')
        rd(0); rd(1)
        hooks(-1)
        for dl in range(4):
            if dl == 3:
                pre_write()
            for t in range(4):
                jt = 4 * g + t
                for mp in range(jt + 1):
                    a.wait(toks[dl, mp])
                    c = '0' if dl == 0 and mp == 0 else vr(acc[t], 4)
                    a(f'v_mfma_f32_16x16x32_bf16 {vr(acc[t], 4)}, {vr(self.areg(g, dl, jt - mp), 4)}, {vr(breg(dl, mp), 4)}, {c}')
                if dl == 3 and t >= 2:
                    a(f'ds_write_b128 v26, {vr(acc[t - 2], 4)} offset:{1024 * (t - 2)}')
            if dl + 2 < 4:
                rd(dl + 2)
            if dl < 3:
                hooks(dl)
        for t in (2, 3):
            a(f'ds_write_b128 v26, {vr(acc[t], 4)} offset:{1024 * t}')

    def conv_epi(self, after_reads=None):
        a = self.a
        toks = [a(f'ds_read_b128 {vr(32 + 4 * k, 4)}, v27 offset:{4096 * k}') for k in range(4)]
        if after_reads:
            after_reads()
        for ch in range(2):
            for j in range(2):
                a(f'v_lshlrev_b32 v{48 + 4 * ch + 2 * j}, 16, v{8 + 2 * ch + j}')
                a(f'v_and_b32 v{49 + 4 * ch + 2 * j}, 0xffff0000, v{8 + 2 * ch + j}')
        for i in range(4):
            a(f'v_lshlrev_b32 v{56 + i}, 16, v{4 + i}\nv_and_b32 v{60 + i}, 0xffff0000, v{4 + i}')
        for k in range(8):
            a(f'v_fmac_f32 v{56 + k}, v{14 + k // 4}, v{48 + k}')
        for ch in range(2):
            a.wait(toks[2 * ch + 1])
            y = 32 + 8 * ch
            for i in range(4):
                a(f'v_add_f32 v{y + i}, v{y + i}, v{y + 4 + i}')
            for i in range(4):
                a(f'v_fmac_f32 v{56 + 4 * ch + i}, s{S_MOD + 4 + ch}, v{y + i}')
            for i in range(4):
                a(f'v_mul_f32 v{y + 4 + i}, s{S_MOD + 6 + ch}, v{56 + 4 * ch + i}')
        for i in range(4):
            a(f'v_cvt_pk_bf16_f32 v{8 + i}, v{36 + i}, v{44 + i}')
        a(f'global_store_dwordx4 v30, v[8:11], {sp(S_WS)} sc1')
        for i in range(4):
            a(f'v_cvt_pk_bf16_f32 v{4 + i}, v{56 + i}, v{60 + i}')
        return a(f'global_store_dwordx4 v29, v[4:7], {sp(S_WS)} sc1')

    def flag(self, va, vd, lanes=255, pre=None):
        self.a(f'''
        v_lshl_add_u32 v{va}, v1, 4, {T0}
        v_mov_b32 v{vd}, s{S_TAG}
        v_mov_b32 v{vd + 1}, s{S_TAG + 1}
        v_mov_b32 v{vd + 2}, s{S_TAG}
        v_mov_b32 v{vd + 3}, s{S_TAG + 1}
        ''')
        if pre:
            pre()
        self.a(f'''
        s_mov_b64 exec, {lanes}
        global_store_dwordx4 v{va}, {vr(vd, 4)}, {sp(S_WS)} sc1
        s_mov_b64 exec, -1
        ''')

    def flag2(self, va, vd, pre):
        self.a(f'''
        s_lshl_b32 {T0}, s{S_V}, 12
        s_lshl_b32 {T1}, s{S_P}, 4
        s_add_u32 {T0}, {T0}, {T1}
        s_add_u32 {T0}, {T0}, {WS_F2}
        ''')
        self.flag(va, vd, 1, pre)

    def sig(self, c, r=62):
        self.a(f'''
        v_mov_b32 v{r}, {L_CNT}
        v_mov_b32 v{r + 1}, 1
        s_mov_b64 exec, 1
        ds_add_u32 v{r}, v{r + 1} offset:{4 * c}
        s_mov_b64 exec, -1
        ''')

    def await_(self, c, c2=None, r=60):
        a = self.a
        lp = a.label('cw')
        a(f'v_mov_b32 v62, {L_CNT}\n{lp}:')
        if c2 is None:
            a(f'ds_read_b32 v{r}, v62 offset:{4 * c}\ns_waitcnt lgkmcnt(0)')
        else:
            a(f'ds_read2_b32 {vr(r, 2)}, v62 offset0:{c} offset1:{c2}\ns_waitcnt lgkmcnt(0)\nv_min_u32 v{r}, v{r}, v{r + 1}')
        a(f'v_cmp_gt_u32 vcc, 4, v{r}\ns_cbranch_vccnz {lp}')

    def sv_issue(self):
        a = self.a
        for k in range(8):
            t = a(f'global_load_dwordx4 {vr(128 + 4 * k, 4)}, v{30 + (k >> 2)}, {sp(S_WS)} offset:{512 * (k & 3)} sc1')
        return t

    def sv_build(self, tok):
        a = self.a
        self.poll(self.sv_issue, [130 + 4 * k for k in range(8)], tok)
        for b in (128, 144):
            for d, s in ((0, 4), (8, 12), (0, 8)):
                a(f'v_add_f32 v{b + d}, v{b + d}, v{b + s}\nv_add_f32 v{b + d + 1}, v{b + d + 1}, v{b + s + 1}')
            a(f'v_cvt_pk_bf16_f32 v{b}, v{b}, v{b + 1}')
        a(f'''
        v_lshlrev_b32 v146, 16, v144
        v_and_b32 v147, 0xffff0000, v144
        v_add_f32 v146, 1.0, v146
        v_add_f32 v147, 1.0, v147
        v_cvt_pk_bf16_f32 v144, v146, v147
        v_lshlrev_b32 v146, 2, v0
        v_add_u32 v146, {L_SV}, v146
        ds_write_b32 v146, v144
        ds_write_b32 v146, v128 offset:1024
        ''')

    def cf_addr(self):
        self.a(f'''
        v_lshrrev_b32 v16, 4, v1
        v_bfe_u32 v17, v1, 2, 2
        v_and_b32 v18, 1, v16
        v_lshrrev_b32 v19, 1, v17
        v_lshl_add_u32 v18, v18, 1, v19
        v_xor_b32 v18, s{S_U}, v18
        v_lshlrev_b32 v19, 11, v16
        v_lshl_add_u32 v19, v17, 7, v19
        v_lshl_add_u32 v19, v18, 5, v19
        v_and_b32 v18, 1, v1
        v_bfe_u32 v17, v1, 1, 1
        v_lshl_or_b32 v17, v18, 1, v17
        v_lshl_add_u32 v12, v17, 3, v19
        v_xor_b32 v13, 64, v12
        v_add_u32 v13, 1024, v13
        v_lshlrev_b32 v18, 10, v18
        v_lshl_add_u32 v18, v16, 4, v18
        v_add_u32 v14, {L_SV}, v18
        ''')

    def cfrags(self, hook):
        a = self.a
        toks = {}

        def rd(k):
            b = 72 + 12 * (k % 4)
            if k == 8:
                a('v_add_u32 v12, 0x10000, v12\nv_add_u32 v13, 0x10000, v13')
            a(f'ds_read_b128 {vr(b, 4)}, v14 offset:{64 * k}')
            for mat in range(2):
                for hf in range(2):
                    toks[k, mat] = a(f'ds_read_b64_tr_b16 {vr(b + 4 + 4 * mat + 2 * hf, 2)}, v{12 + mat} offset:{8192 * (k & 7) + 512 * hf}')
        rd(0); rd(1); rd(2)
        for k in range(16):
            b = 72 + 12 * (k % 4)
            a.wait(toks[k, 1])
            if k + 3 < 16:
                rd(k + 3)
            if k == 10:
                hook()
            for mat in range(2):
                acc = vr(16 + 4 * mat, 4)
                a(f'v_mfma_f32_16x16x32_bf16 {acc}, {vr(b, 4)}, {vr(b + 4 + 4 * mat, 4)}, {"0" if k == 0 else acc}')
        a(f'''
        s_mov_b32 vcc_lo, 0xffff0000
        s_mov_b32 vcc_hi, 0xffff0000
        s_lshl_b32 {T0}, s{S_NB1}, 11
        s_lshl_b32 {T1}, s{S_U}, 9
        s_add_u32 {T0}, {T0}, {T1}
        s_add_u32 {T0}, {T0}, {WS_CF}
        v_lshl_add_u32 v15, v1, 4, {T0}
        s_mov_b32 {T0}, 0x05040100
        s_mov_b32 {T1}, 0x07060302
        v_cndmask_b32 v16, v16, v20, vcc
        v_cndmask_b32 v17, v17, v21, vcc
        v_cvt_pk_bf16_f32 v24, v16, v17
        v_lshlrev_b32 v18, 16, v24
        v_and_b32 v19, 0xffff0000, v24
        v_sub_f32 v16, v16, v18
        v_sub_f32 v17, v17, v19
        v_cvt_pk_bf16_f32 v25, v16, v17
        v_mov_b32 v22, s{S_TAG}
        v_mov_b32 v23, s{S_TAG + 1}
        v_perm_b32 v20, v25, v24, {T0}
        v_perm_b32 v21, v25, v24, {T1}
        s_mov_b32 exec_hi, 0
        global_store_dwordx4 v15, v[20:23], {sp(S_WS)} sc1
        s_mov_b32 exec_hi, -1
        ''')

    def stats2_job(self):
        a = self.a
        a(f'''
        s_lshl_b32 {T0}, s{S_RG1}, 15
        s_lshl_b32 {T1}, s{S_U}, 13
        s_add_u32 {T0}, {T0}, {T1}
        s_add_u32 {T0}, {T0}, {WS_X1 + 4096}
        v_lshl_add_u32 v69, v1, 4, {T0}
        ''')
        tj = [a(f'global_load_dwordx4 {vr(72 + 4 * k, 4)}, v69, {sp(S_WS)} offset:{1024 * k - 4096} sc1') for k in range(8)]
        a(f'''
        v_and_b32 v66, 7, v1
        v_lshrrev_b32 v67, 4, v1
        v_lshl_add_u32 v66, v66, 2, v67
        s_lshl_b32 {T0}, s{S_V}, 8
        s_add_u32 {T0}, {T0}, {L_S2}
        v_lshl_add_u32 v66, v66, 3, {T0}
        v_and_b32 v68, 31, v1
        v_lshl_add_u32 v67, v68, 3, {T0}
        s_lshl_b32 {T0}, s{S_RG1}, 9
        s_add_u32 {T0}, {T0}, {WS_ST2}
        v_lshl_add_u32 v69, v68, 4, {T0}
        s_mov_b32 {T0}, {ONES}
        ''')
        for k in range(8):
            a.wait(tj[k])
            for i in range(4):
                x = 72 + 4 * k + i
                a(f'v_dot2_f32_bf16 v{52 + i}, v{x}, {T0}, {"0" if k == 0 else "v%d" % (52 + i)}')
                a(f'v_dot2_f32_bf16 v{56 + i}, v{x}, v{x}, {"0" if k == 0 else "v%d" % (56 + i)}')
        for b in (52, 56):
            a(f'v_permlane32_swap_b32 v{b}, v{b + 2}\nv_permlane32_swap_b32 v{b + 1}, v{b + 3}')
        for b in (52, 56):
            a(f'v_add_f32 v{b}, v{b}, v{b + 2}\nv_add_f32 v{b + 1}, v{b + 1}, v{b + 3}')
        for b in (52, 56):
            a(f'v_permlane16_swap_b32 v{b}, v{b + 1}')
        a(f'''
        v_add_f32 v64, v52, v53
        v_add_f32 v65, v56, v57
        v_add_f32_dpp v64, v64, v64 row_ror:8 row_mask:0xf bank_mask:0xf
        v_add_f32_dpp v65, v65, v65 row_ror:8 row_mask:0xf bank_mask:0xf
        ds_write_b64 v66, v[64:65]
        ''')
        self.cond(G0, lambda: self.sig(C_S0), lambda: self.sig(C_S1))

        def fin():
            self.cond(G0, lambda: self.await_(C_S0), lambda: self.await_(C_S1))
            for k in range(4):
                a(f'ds_read_b64 {vr(40 + 2 * k, 2)}, v67 offset:{256 * k}')
            a(f'''
            s_mov_b32 {T0}, {fhex(1 / 512)}
            v_mov_b32 v58, s{S_TAG}
            v_mov_b32 v59, s{S_TAG + 1}
            s_waitcnt lgkmcnt(0)
            ''')
            for d, s in ((40, 42), (44, 46), (40, 44)):
                a(f'v_add_f32 v{d}, v{d}, v{s}\nv_add_f32 v{d + 1}, v{d + 1}, v{s + 1}')
            a(f'v_mul_f32 v40, {T0}, v40\nv_mul_f32 v41, {T0}, v41')
            self.meanstd(40, 41, 1, 42)
            a(f'''
            v_cvt_pk_bf16_f32 v56, -v40, -v40
            v_cvt_pk_bf16_f32 v57, v41, v41
            s_mov_b32 exec_hi, 0
            global_store_dwordx4 v69, v[56:59], {sp(S_WS)} sc1
            s_mov_b32 exec_hi, -1
            ''')
        self.cond(f's_cmp_eq_u32 s{S_U}, 0', fin)

    def f2_addr(self):
        self.a(f'''
        s_lshr_b32 {T0}, s{S_RG1}, 3
        s_lshl_b32 {T0}, {T0}, 12
        s_lshl_b32 {T1}, s{S_U}, 10
        s_add_u32 {T0}, {T0}, {T1}
        s_add_u32 {T0}, {T0}, {WS_F2}
        v_lshl_add_u32 v70, v1, 4, {T0}
        ''')

    def f2_issue(self):
        return self.a(f'global_load_dwordx2 v[60:61], v70, {sp(S_WS)} sc1')

    def g1_addr(self):
        self.a(f'''
        v_lshrrev_b32 v8, 5, v1
        v_bfe_u32 v9, v1, 4, 1
        v_bfe_u32 v10, v1, 2, 2
        v_xor_b32 v11, v8, v9
        v_lshrrev_b32 v2, 1, v10
        v_lshl_add_u32 v11, v11, 1, v2
        v_lshlrev_b32 v2, 11, v8
        v_lshl_add_u32 v2, v9, 10, v2
        v_lshl_add_u32 v2, v10, 7, v2
        v_lshl_add_u32 v2, v11, 5, v2
        v_and_b32 v9, 1, v1
        v_bfe_u32 v10, v1, 1, 1
        v_lshl_or_b32 v7, v9, 1, v10
        v_lshl_add_u32 v2, v7, 3, v2
        v_xor_b32 v3, 32, v2
        v_xor_b32 v4, 64, v2
        v_xor_b32 v5, 0x60, v2
        v_and_b32 v9, 31, v1
        v_lshlrev_b32 v9, 2, v9
        v_lshl_add_u32 v9, v8, 9, v9
        s_lshl_b32 {T0}, s{S_RG1}, 15
        s_add_u32 {T1}, {T0}, {WS_X1S + 4096}
        v_add_u32 v6, {T1}, v9
        ''')

    def xload(self, ks, j):
        if ks and ks % 8 == 0 and j == 0:
            self.a('v_add_u32 v6, 8192, v6')
        return self.a(f'global_load_dword v{8 + 4 * (ks % 8) + j}, v6, {sp(S_WS)} offset:{1024 * (ks % 8) + 128 * j - 4096} sc1')

    def st2_issue(self):
        a = self.a
        a(f'global_load_dwordx4 v[8:11], v6, {sp(S_WS)} sc1')
        a(f'global_load_dwordx4 v[12:15], v7, {sp(S_WS)} sc1')
        return a(f'global_load_dwordx4 v[16:19], v7, {sp(S_WS)} offset:1024 sc1')

    def g1_main(self):
        a = self.a
        xt = {}
        wt = {}

        def wread(ks, s):
            if ks == 16:
                a(f'v_add_u32 v{2 + s}, 0x10000, v{2 + s}')
            b = 40 + 16 * (ks & 1) + 4 * s
            a(f'ds_read_b64_tr_b16 {vr(b, 2)}, v{2 + s} offset:{4096 * (ks & 15)}')
            wt[ks, s] = a(f'ds_read_b64_tr_b16 {vr(b + 2, 2)}, v{2 + s} offset:{4096 * (ks & 15) + 512}')
        for ks in range(7):
            for j in range(4):
                xt[ks] = self.xload(ks, j)
        a('s_waitcnt lgkmcnt(0)')
        for s in range(4):
            wread(0, s)
        fill = L(f'''
        s_lshl_b32 {T0}, s{S_RG1}, 9
        s_add_u32 {T0}, {T0}, {WS_ST2}
        v_and_b32 v6, 31, v1
        v_lshl_add_u32 v6, v6, 4, {T0}
        s_lshl_b32 {T0}, s{S_NB1}, 11
        s_add_u32 {T0}, {T0}, {WS_CF}
        v_lshl_add_u32 v7, v1, 4, {T0}
        ''')
        ts2 = None

        def mma(ks, s):
            a.wait(xt[ks], wt[ks, s])
            acc = vr(72 + 16 * s, 16)
            a(f'v_mfma_f32_32x32x16_bf16 {acc}, {vr(40 + 16 * (ks & 1) + 4 * s, 4)}, {vr(8 + 4 * (ks % 8), 4)}, {"0" if ks == 0 else acc}')
        for ks in range(30):
            for s in range(4):
                if s == 0:
                    self.stamp(f'k{ks}')
                mma(ks, s)
                wread(ks + 1, s)
                if ks == 29:
                    wread(31, s)
                if ks + 7 < 32:
                    xt[ks + 7] = self.xload(ks + 7, s)
                elif fill:
                    a(fill[:2]); fill = fill[2:]
                if ks == 26 and s == 3:
                    ts2 = self.st2_issue()
                    fill = L(f'''
                    s_mul_i32 {T0}, s{S_RG1}, 114688
                    s_lshl_b32 {T1}, s{S_NB1}, 12
                    s_add_u32 {T0}, {T0}, {T1}
                    s_add_u32 {T0}, {T0}, {WS_HH}
                    v_lshl_add_u32 v249, v1, 4, {T0}
                    s_lshl_b32 {T0}, s{S_RG2}, 12
                    s_lshl_b32 {T1}, s{S_KB0}, 7
                    s_add_u32 {T0}, {T0}, {T1}
                    s_add_u32 {T0}, {T0}, {WS_F3}
                    v_and_b32 v250, 3, v1
                    v_lshl_add_u32 v250, v250, 7, {T0}
                    ''')
        assert not fill
        self.stamp('k30')
        self.poll(self.st2_issue, [10, 14, 18], ts2)
        self.tf3 = []
        self.cond(G1, lambda: self.tf3.append(self.f3_issue()))
        fill = L(f'''
        s_mov_b32 vcc_lo, -1
        s_mov_b32 vcc_hi, 0
        v_cndmask_b32 v20, 0, v8, vcc
        v_cndmask_b32 v21, 0, v9, vcc
        v_mov_b32 v22, 0
        v_mov_b32 v23, 0
        v_mov_b32 v14, 0
        v_mov_b32 v15, 0
        v_xor_b32 v8, v8, v20
        v_xor_b32 v9, v9, v21
        v_mov_b32 v10, 0
        v_mov_b32 v11, 0
        v_mov_b32 v18, 0
        v_mov_b32 v19, 0
        ''')

        def epi(s):
            b = 72 + 16 * s
            return ([f'v_mul_f32 v{b + j}, v{b + j}, v{b + 8 + j}' for j in range(8)]
                    + [f'v_cvt_pk_bf16_f32 v{b + 8 + j}, v{b + 2 * j}, v{b + 2 * j + 1}' for j in range(4)]
                    + [f'global_store_dwordx4 v249, {vr(b + 8, 4)}, {sp(S_WS)} offset:{1024 * s} sc1'])
        for s in range(4):
            acc = vr(72 + 16 * s, 16)
            n = (4, 4, 6) if s == 0 else (0, 0, 7) if s == 1 else (6, 0, 7)
            mma(30, s)
            a(fill[:n[0]]); fill = fill[n[0]:]
            mma(31, s)
            a(fill[:n[1]]); fill = fill[n[1]:]
            a(f'v_mfma_f32_32x32x16_bf16 {acc}, {vr(12 + 4 * (s >> 1), 4)}, {vr(8 if s & 1 else 20, 4)}, {acc}')
            if s:
                fill += epi(s - 1)
            a(fill[:n[2]]); fill = fill[n[2]:]
        self.stamp('g1 loop')
        a(fill)
        self.thh = a(epi(3))

    def flag3(self):
        self.a(f'''
        s_lshl_b32 {T0}, s{S_RG1}, 12
        s_lshl_b32 {T1}, s{S_NB1}, 7
        s_add_u32 {T0}, {T0}, {T1}
        s_add_u32 {T0}, {T0}, {WS_F3}
        ''')
        self.flag(104, 108)

    def flag_read(self, d, va):
        if not self.o['atom']:
            return self.a(f'global_load_dwordx2 {vr(d, 2)}, v{va}, {sp(S_WS)} sc1')
        self.a(f'v_mov_b32 v{d}, 0\nv_mov_b32 v{d + 1}, 0')
        return self.a(f'global_atomic_add_x2 {vr(d, 2)}, v{va}, {vr(d, 2)}, {sp(S_WS)} sc0 sc1')

    def fw_addr(self):
        self.a(f'''
        s_lshl_b32 {T0}, s{S_DB}, 5
        s_add_u32 {T0}, {T0}, s{S_KB0}
        s_lshl_b32 {T0}, {T0}, 7
        s_add_u32 {T0}, {T0}, {WS_FW}
        v_and_b32 v251, 3, v1
        v_lshl_add_u32 v251, v251, 7, {T0}
        ''')

    def fw_issue(self):
        return self.masked(15, self.fw_load)

    def fw_load(self):
        return self.flag_read(254, 251)

    def wd_addr(self):
        self.a(f'''
        s_mul_i32 {T0}, s{S_DB}, 229376
        s_mul_i32 {T1}, s{S_V}, 28672
        s_add_u32 {T0}, {T0}, {T1}
        s_add_u32 {T0}, {T0}, {WS_WDP + 4096}
        v_lshl_add_u32 v248, v1, 4, {T0}
        ''')

    def wd_one(self, k, va=248):
        if k and k % 8 == 0:
            self.a(f'v_add_u32 v{va}, 8192, v{va}')
        return self.a(f'global_load_dwordx4 {vr(136 + 4 * k, 4)}, v{va}, {sp(S_WS)} offset:{1024 * (k % 8) - 4096} sc1')

    def wd_run(self, k0, k1, pace, hooks={}):
        toks = []
        for k in range(k0, k1):
            if k in hooks:
                hooks[k]()
            if pace and len(toks) >= pace:
                self.a.wait(toks[-pace])
            toks.append(self.wd_one(k))

    def gb_issue(self):
        for k in range(4):
            t = self.a(f'global_load_dwordx4 {vr(8 + 4 * k, 4)}, v24, {sp(S_WS)} offset:{512 * k} sc1')
        return t

    def gb_build(self):
        a = self.a
        a(f'''
        s_add_u32 {T0}, s{S_DB}, 40
        s_lshl_b32 {T0}, {T0}, 11
        s_add_u32 {T0}, {T0}, {WS_MODP}
        v_and_b32 v25, 31, v1
        v_lshl_add_u32 v24, v25, 4, {T0}
        ''')
        a('s_mov_b32 exec_hi, 0')
        t = self.gb_issue()
        self.poll(self.gb_issue, [10, 14, 18, 22], t)
        a(f'''
        v_add_f32 v8, v8, v12
        v_add_f32 v9, v9, v13
        v_add_f32 v16, v16, v20
        v_add_f32 v17, v17, v21
        v_add_f32 v8, v8, v16
        v_add_f32 v9, v9, v17
        v_cvt_pk_bf16_f32 v10, v8, v9
        v_lshlrev_b32 v8, 16, v10
        v_and_b32 v9, 0xffff0000, v10
        v_lshlrev_b32 v25, 3, v25
        v_add_u32 v25, {L_GB}, v25
        s_mov_b32 exec_hi, 0
        ds_write_b64 v25, v[8:9]
        s_mov_b32 exec_hi, -1
        ''')

    def f3_addr(self):
        self.a(f'''
        s_lshl_b32 {T0}, s{S_RG2}, 12
        s_lshl_b32 {T1}, s{S_KB0}, 7
        s_add_u32 {T0}, {T0}, {T1}
        s_add_u32 {T0}, {T0}, {WS_F3}
        v_and_b32 v250, 3, v1
        v_lshl_add_u32 v250, v250, 7, {T0}
        ''')

    def g2_addr(self):
        self.a(f'''
        s_mul_i32 {T0}, s{S_RG2}, 114688
        s_mul_i32 {T1}, s{S_V}, 14336
        s_add_u32 {T0}, {T0}, {T1}
        s_add_u32 {T0}, {T0}, {WS_HH + 4096}
        v_lshl_add_u32 v3, v1, 4, {T0}
        v_add_u32 v4, 8192, v3
        s_lshl_b32 {T0}, s{S_RG2}, 15
        s_lshl_b32 {T1}, s{S_DB}, 12
        s_add_u32 {T0}, {T0}, {T1}
        s_add_u32 {T0}, {T0}, {WS_X1}
        v_and_b32 v5, 255, v0
        v_lshl_add_u32 v5, v5, 4, {T0}
        v_lshrrev_b32 v6, 7, v0
        v_bfe_u32 v7, v0, 4, 1
        v_lshl_add_u32 v6, v6, 1, v7
        v_bfe_u32 v7, v0, 5, 2
        v_lshl_add_u32 v6, v6, 2, v7
        v_lshlrev_b32 v7, 3, v0
        s_lshl_b32 {T0}, s{S_RG2}, 9
        s_add_u32 {T0}, {T0}, {WS_ST2 + 4}
        v_lshl_add_u32 v2, v6, 4, {T0}
        ''')

    def f3_issue(self):
        return self.masked(15, self.f3_load)

    def f3_load(self):
        return self.flag_read(252, 250)

    def g2_ld(self, half, s, hooks={}):
        a = self.a
        if s in hooks:
            hooks[s]()
        if s < 14:
            self.ht.setdefault(s, []).append(
                a(f'global_load_dwordx4 {vr(8 + 4 * s, 4)}, v{3 + s // 8}, {sp(S_WS)} offset:{1024 * (s % 8) - 4096} sc1'))
        elif s == 14:
            self.tsd[half] = a(f'global_load_dword v{70 + half}, v2, {sp(S_WS)} sc1')
            self.tr = []
            self.cond(G0, lambda: self.tr.append(a(f'global_load_dwordx4 v[64:67], v5, {sp(S_WS)} sc1')))
            if half == 0:
                a(f'''
                v_add_u32 v250, {32 * 4096}, v250
                v_add_u32 v2, {32 * 512}, v2
                v_add_u32 v3, {32 * 114688}, v3
                v_add_u32 v4, {32 * 114688}, v4
                v_add_u32 v5, {32 * 32768}, v5
                ''')

    def g2_start(self, half, tok, ahead, hooks={}):
        self.poll(self.f3_load, [252], tok, back=2, lanes=15)
        self.stamp(f'f3 h{half}')
        for s in range(ahead):
            self.g2_ld(half, s, hooks)

    def g2_half(self, half, ahead, hooks={}):
        a = self.a
        for s in range(14):
            a.wait(*self.ht[s])
            for e in range(2):
                acc = vr(72 + 16 * e, 16)
                a(f'v_mfma_f32_32x32x16_bf16 {acc}, {vr(8 + 4 * s, 4)}, {vr(136 + 8 * s + 4 * e, 4)}, {"0" if s == 0 else acc}')
            self.g2_ld(half, s + ahead, hooks)
        self.ht = {}
        a.wait(self.tsd[half])

        def stash():
            a(f'''
            v_bfe_u32 v68, v0, 3, 5
            v_mul_u32_u24 v68, 144, v68
            v_and_b32 v69, 7, v1
            v_lshl_add_u32 v68, v69, 4, v68
            v_add_u32 v68, {L_H + 4608 * half}, v68
            ''')
            a.wait(*self.tr)
            a('ds_write_b128 v68, v[64:67]')
        self.cond(G0, stash)
        a(f's_lshl_b32 {T0}, s{S_V}, 13\ns_add_u32 m0, {T0}, {half << 16}')
        self.stamp(f'mma{half}')

    def g2_partials(self):
        for r in range(32):
            self.a(f'ds_write_addtid_b32 v{72 + r} offset:{256 * r}')

    def g2_final(self, half):
        a = self.a
        if half:
            a('v_add_u32 v7, 0x10000, v7')
        toks = []
        for k in range(8):
            a(f'ds_read_b64 {vr(104 + 4 * k, 2)}, v7 offset:{8192 * k}')
            toks.append(a(f'ds_read_b64 {vr(106 + 4 * k, 2)}, v7 offset:{8192 * k + 4096}'))
        a(f'''
        v_and_b32 v248, 15, v1
        v_mul_u32_u24 v249, 288, v248
        v_lshl_add_u32 v249, v6, 2, v249
        v_add_u32 v249, {L_H + 4608 * half}, v249
        ds_read2_b32 v[68:69], v249 offset0:0 offset1:36
        v_lshlrev_b32 v249, 4, v248
        v_add_u32 v249, {L_GB}, v249
        ''')
        tg = a('ds_read_b128 v[72:75], v249')
        a.wait(self.tsd[half])
        a(f'''
        v_lshlrev_b32 v76, 16, v{70 + half}
        s_lshl_b32 {T0}, s{S_RG2}, 15
        s_lshl_b32 {T1}, s{S_DB}, 7
        v_rcp_f32 v76, v76
        s_add_u32 {T0}, {T0}, {T1}
        s_add_u32 {T0}, {T0}, {half << 20}
        v_lshlrev_b32 v251, 10, v6
        v_lshl_add_u32 v251, v248, 3, v251
        v_add_u32 v251, {T0}, v251
        v_mul_f32 v76, v76, v76
        ''')
        for k in range(1, 8):
            a.wait(toks[k])
            for j in range(4):
                a(f'v_add_f32 v{104 + j}, v{104 + j}, v{104 + 4 * k + j}')
        a.wait(tg)
        a(f'''
        v_mul_f32 v72, v76, v72
        v_mul_f32 v73, v76, v73
        v_mul_f32 v74, v76, v74
        v_mul_f32 v75, v76, v75
        v_lshlrev_b32 v108, 16, v68
        v_and_b32 v109, 0xffff0000, v68
        v_lshlrev_b32 v110, 16, v69
        v_and_b32 v111, 0xffff0000, v69
        v_fmac_f32 v108, v72, v104
        v_fmac_f32 v109, v73, v106
        v_fmac_f32 v110, v74, v105
        v_fmac_f32 v111, v75, v107
        v_cvt_pk_bf16_f32 v108, v108, v109
        v_cvt_pk_bf16_f32 v109, v110, v111
        global_store_dwordx2 v251, v[108:109], {sp(S_OUT)} {self.o.get('outsc', '')}
        ''')

    def build(self):
        a = self.a
        self.front()
        self.chains()
        self.kprod()
        self.expand()
        st = {}

        o = self.o

        w3 = self.take_w('b4', 5)
        wlate = self.take_w(None, 0, 0)

        def g0_conv():
            if o['s1at'] == 'b4':
                self.ts1 = self.s1_start()
            self.afrags(0)
            if o['s1at'] == 'af':
                self.ts1 = self.s1_start()
            self.hbuild(self.ts1, lambda: self.sig(C_H0))
            a('s_setprio 2')
            self.await_(C_H0)
            self.stamp('B5')
            self.conv(0, lambda dl: None, lambda: None)
            self.sig(C_P0)
            self.await_(C_P0)
            self.stamp('B6')
            t = self.conv_epi(lambda: self.sig(C_PC))
            self.fw_addr()
            self.wd_addr()

            self.f2_addr()
            self.flag2(27, 32, lambda: a.wait(t))
            self.stamp('flag2')

            def sv_addr():
                a(f'''
                v_lshrrev_b32 v30, 5, v0
                v_lshlrev_b32 v30, 11, v30
                v_and_b32 v31, 31, v1
                v_lshl_add_u32 v30, v31, 4, v30
                v_add_u32 v31, {WS_MODP + 32 * 2048}, v30
                v_add_u32 v30, {WS_MODP + 24 * 2048}, v30
                ''')
                st['sv'] = self.sv_issue()
            self.cond(MAIN, lambda: st.update(fw=self.fw_issue()) if o['wd_pre'] else None, sv_addr)
            free = [x for x in wlate if x[0] >= 5]
            self.wdma(free, G0)
            self.await_(C_H1)
            self.wdma(wlate[len(free):], G0)
            tw = self.twd

            def main0():
                if o['wd_pre']:
                    self.poll(self.fw_load, [254], st['fw'], lanes=15)
                    self.wd_run(0, o['wd_pre'], 0)
                self.g1_addr()
                a.wait(tw)
                self.stamp('B7')
                self.poll(self.f2_issue, [60], self.f2_issue())
                self.sig(C_W)
                self.await_(C_W, C_P1)

            def spare0():
                self.sv_build(st['sv'])
                self.cf_addr()
                a('s_waitcnt vmcnt(0)')
                self.sig(C_W)
                self.await_(C_W, C_P1)
                self.stamp('B7')
                tf = []
                self.cfrags(lambda: tf.append(self.f2_issue()))
                self.poll(self.f2_issue, [60], tf)
            self.cond(MAIN, main0, spare0)

        def g1_conv():
            n = o.get('s1pos', 0)

            def fwflag(pre=None):
                a(f's_lshl_b32 {T0}, s{S_P}, 7\ns_add_u32 {T0}, {T0}, {WS_FW}')
                self.flag(56, 52, pre=pre)

            def packed():
                a.wait(self.tps)
                self.sig(C_K)
                self.cond(W4, lambda: fwflag(lambda: self.await_(C_K)))
            if o.get('h1first'):
                t = self.s1_start()
            self.cond(MAIN, self.pack_store if o['packat'] else self.pack_load)
            self.wdma(w3[:n])
            self.afrags(1)
            if not o.get('h1first'):
                t = self.s1_start()
            if o['packat']:
                self.cond(MAIN, packed)
            self.wdma(w3[n:])
            if not o['packat']:
                self.cond(MAIN, self.pack_store)
            self.hbuild(t, lambda: self.sig(C_H1))
            self.await_(C_P0 if o['convseq'] else C_H0, C_H1)
            self.stamp('B5')
            self.conv(1, lambda dl: None, lambda: self.await_(C_PC))
            a('s_waitcnt vmcnt(0)')
            self.sig(C_P1)
            self.await_(C_P1)
            if not o['packat']:
                self.cond(W4, lambda: self.cond(MAIN, fwflag))
            self.stamp('B6')
            t = self.conv_epi()
            self.fw_addr()
            self.wd_addr()
            self.f2_addr()
            self.flag2(27, 32, lambda: a.wait(t))
            self.stamp('flag2')
            t = self.fw_issue()
            self.cond(W4, self.gb_build)
            self.poll(self.fw_load, [254], t, lanes=15)
            self.cond(MAIN, self.g1_addr)

            def f2_check():
                self.poll(self.f2_issue, [60], st['f2'])
                self.sig(C_G1)
            k = o['f2k']
            self.wd_run(0, 28, o['wd_pace'], {k: lambda: st.update(f2=self.f2_issue()), k + o['wd_pace']: f2_check})
            self.stamp('B7')

            def main1():
                self.await_(C_G1, C_W)
                a('s_setprio 1')
            self.cond(MAIN, main1)
        self.cond(G0, g0_conv, g1_conv)
        self.stamp('f2')

        def main_wg():
            self.g1_main()
            self.stamp('g1 end')

            def g0_d():
                a('s_setprio 0')
                t = None if o['wd_pre'] else self.fw_issue()
                a.wait(self.thh)
                self.flag3()
                self.stamp('flag3')
                if t:
                    self.poll(self.fw_load, [254], t, lanes=15)
                self.wd_run(o['wd_pre'], 28, o['wd_pace'])
                a.wait(self.f3_issue())
            self.cond(G0, g0_d, lambda: a.wait(*self.tf3))

        def spare_wg():
            self.stats2_job()
            self.stamp('g1 loop')
            self.barrier('g1 end')
            self.f3_addr()

            def g0_w():
                self.poll(self.fw_load, [254], self.fw_issue(), lanes=15)
                self.wd_run(0, 28, 0)
            self.cond(G0, g0_w)
            a.wait(self.f3_issue())
            self.stamp('flag3')
        self.cond(MAIN, main_wg, spare_wg)
        self.g2_addr()

        def g1_flag():
            a.wait(self.thh)
            self.flag3()
            self.stamp('flag3')
        hk = {o['n_pre']: lambda: self.cond(G1, lambda: self.cond(MAIN, g1_flag)),
              o.get('bxpos', 7): lambda: self.cond(G1, lambda: self.barrier('Bx'))}
        self.g2_start(0, None, o['h_ahead'], hk)
        self.g2_half(0, o['h_ahead'], hk)
        self.cond(G0, lambda: self.barrier('Bx'))
        a('s_setprio 0')
        ah1 = o.get('h1_ahead', 8)
        if o['g0first']:
            self.g2_partials()
            t1 = self.f3_issue()
            self.cond(G0, lambda: self.g2_start(1, t1, ah1))
            self.barrier('By')
            self.g2_final(0)
            self.stamp('fin0')
            self.cond(G1, lambda: self.g2_start(1, t1, ah1))
        else:
            t1 = self.f3_issue()
            self.g2_partials()
            self.barrier('By')
            self.g2_final(0)
            self.stamp('fin0')
            self.g2_start(1, t1, ah1)
        self.g2_half(1, ah1)
        self.g2_partials()
        self.barrier('Bz')
        self.g2_final(1)

        def epoch():
            a(f's_mov_b32 {T0}, 0')
            self.flag(67, 72, 1)
        a(f's_or_b32 {T0}, s2, s{S_V}')
        self.cond(f's_cmp_eq_u32 {T0}, 0', epoch)
        if self.stamps and self.o.get('diag_hold'):
            self.stamp('end')
            if 'diag_wg' in self.o:
                a(f"s_cmp_lg_u32 s2, {self.o['diag_wg']}\ns_cbranch_scc1 L_exit")
            a(f'''
            s_waitcnt lgkmcnt(0)
            L_hold:
            s_memrealtime {sp(S_T)}
            s_waitcnt lgkmcnt(0)
            s_sub_u32 {T0}, {T0}, s{S_STAMP}
            s_cmp_lt_u32 {T0}, 6000
            s_cbranch_scc1 L_hold
            ''')
        elif self.stamps and self.o.get('dbgout'):
            self.stamp('end')
            a(f's_load_dwordx2 {sp(S_T)}, s[0:1], 128\nv_mov_b32 v2, 0\ns_waitcnt lgkmcnt(0)\ns_mov_b64 exec, 1')
            a(f's_not_b32 {T2}, s{S_STAMP}\nv_mov_b32 v7, {T2}\nglobal_atomic_umax v2, v7, {sp(S_T)}')
            for k in range(len(self.stamps)):
                a(f'v_mov_b32 v{8 + k}, s{S_STAMP + 2 * k}')
                a(f'global_atomic_umax v2, v{8 + k}, {sp(S_T)} offset:{4 * k + 4}')
        elif self.stamps:
            self.stamp('end')
            a(f'''
            s_lshl_b32 {T0}, s2, 3
            s_add_u32 {T0}, {T0}, s{S_V}
            s_lshl_b32 {T0}, {T0}, 7
            s_add_u32 {T0}, {T0}, {WS_DBG}
            v_mov_b32 v2, {T0}
            s_waitcnt lgkmcnt(0)
            s_mov_b64 exec, 1
            ''')
            for k in range(len(self.stamps)):
                a(f'v_mov_b32 v{8 + k}, s{S_STAMP + 2 * k}')
                a(f'global_store_dword v2, v{8 + k}, {sp(S_WS)} offset:{4 * k}')
        a('L_exit:\ns_endpgm')
        nops = a.fix_hazards()
        errs = a.check_waits()
        assert len(a.barrier_counts) == 3, a.barrier_counts
        return nops, errs

    def source(self):
        ref = open(f'cdna_kernels/{NAME}.s.ref').read().split('\n')
        head = [l for l in ref if l.startswith(';') and 'offset' in l or l.startswith('; Kernarg')]
        k = NAME + '_kernel'
        return '\n'.join(head) + f'''
; @launch grid=(256,1,1) block=(512,1,1) lds={LDS_BYTES}
.amdgcn_target "amdgcn-amd-amdhsa--gfx950"
.text
.globl {k}
.p2align 8
.type {k},@function
{k}:
''' + self.a.text() + lag_table() + f'''.section .rodata,"a"
.p2align 6
.amdhsa_kernel {k}
  .amdhsa_next_free_vgpr 256
  .amdhsa_next_free_sgpr 102
  .amdhsa_accum_offset 256
  .amdhsa_group_segment_fixed_size 0
  .amdhsa_kernarg_size 144
  .amdhsa_user_sgpr_count 2
  .amdhsa_user_sgpr_kernarg_segment_ptr 1
  .amdhsa_system_sgpr_workgroup_id_x 1
  .amdhsa_float_denorm_mode_32 3
.end_amdhsa_kernel
'''


def make(path, **kw):
    g = Gen(**kw)
    nops, errs = g.build()
    open(path, 'w').write(g.source())
    return g, nops, errs


if __name__ == '__main__':
    import json
    out = sys.argv[1] if len(sys.argv) > 1 else f'cdna_kernels/{NAME}.s'
    opt = json.loads(sys.argv[2]) if len(sys.argv) > 2 else {}
    g, nops, errs = make(out, opt=opt, stamps=opt.get('stamps'))
    print('instructions', len(g.a.ins), 'nops inserted', nops, 'barrier counts', g.a.barrier_counts)
    for e in errs:
        print('WAIT:', e)
```
